```python
import torch

def _softmax(x, axis=-1):
    return torch.softmax(x, dim=axis)
def _gelu(x):
    return torch.nn.functional.gelu(x, approximate="tanh")
def _silu(x):
    return torch.nn.functional.silu(x)
def _sigmoid(x):
    return torch.sigmoid(x)
def _layernorm(x, axis=-1, eps=1e-5):
    m = x.mean(dim=axis, keepdim=True)
    v = x.var(dim=axis, keepdim=True, unbiased=False)
    return (x - m) / torch.sqrt(v + eps)
def _scatter_add(tgt, idx, src, axis=0):
    return tgt.clone().index_add_(axis, idx, src)
def _segment_sum(src, seg, n):
    out = torch.zeros((n,) + src.shape[1:], dtype=src.dtype)
    return out.index_add_(0, seg, src)
def _pad(x, pw):
    flat = tuple(v for pair in reversed(pw) for v in pair)
    return torch.nn.functional.pad(x, flat)

kernel_name = 'standalone__mha_block_cached__near_ridge'

def setup_inputs():

    _w = (lambda a: (lambda t: t.to(torch.bfloat16) if t.is_floating_point() else t)(torch.as_tensor(a)))
    B, Sq, D = 16, 144, 448
    H, Sk, Dh = 16, 512, 256
    return {
        "x": _w((lambda *s: torch.randn(*s, dtype=torch.bfloat16) * 0.8)(B, Sq, D)),
        "k_cache": _w((lambda *s: torch.randn(*s, dtype=torch.bfloat16) * 0.8)(B, H, Sk, Dh)),
        "v_cache": _w((lambda *s: torch.randn(*s, dtype=torch.bfloat16) * 0.05)(B, H, Sk, Dh)),
        "wq": _w((lambda *s: torch.randn(*s, dtype=torch.bfloat16) * 0.8)(D, H * Dh) * (D ** -0.5)),
        "wo": _w((lambda *s: torch.randn(*s, dtype=torch.bfloat16) * 0.05)(H * Dh, D) * ((H * Dh) ** -0.5)),
    }

def reference(x, k_cache, v_cache, wq, wo):
    B, Sq, D = x.shape
    H, Dh = 16, 256
    q = (lambda x, *d: x.permute(*d))((x @ wq).reshape(B, Sq, H, Dh), 0, 2, 1, 3)
    scores = torch.einsum("bhqd,bhkd->bhqk", q, k_cache) * (Dh ** -0.5)
    p = _softmax(scores, axis=-1)
    o = torch.einsum("bhqk,bhkd->bhqd", p, v_cache)
    return (lambda x, *d: x.permute(*d))(o, 0, 2, 1, 3).reshape(B, Sq, H * Dh) @ wo
```

```python
import struct

def f32hex(x):
    return "0x%08x" % struct.unpack("<I", struct.pack("<f", x))[0]

def R(kind, base, n=1):
    return (kind, base, n)

def V(b, n=1): return ('v', b, n)
def A(b, n=1): return ('a', b, n)

def rs(r):
    if isinstance(r, str): return r
    if isinstance(r, int): return str(r)
    k, b, n = r
    if n == 1: return f"{k}{b}"
    return f"{k}[{b}:{b+n-1}]"

def regs_of(r):
    if isinstance(r, (str, int)): return []
    k, b, n = r
    return [(k, b+i) for i in range(n)]

class Asm:
    def __init__(self):
        self.lines = []
        self.slot = 0
        self.w_valu = {}
        self.w_trans = {}
        self.w_mfma = {}
        self.r_mfmaC = {}
        self.vm_issued = 0; self.vm_done = 0
        self.lg_issued = 0; self.lg_done = 0
        self.nops = 0
        self.count = {}
    def raw(self, s, slots=1):
        self.lines.append("    " + s)
        self.slot += slots
    def label(self, s):
        self.lines.append(s + ":")
    def comment(self, s):
        self.lines.append("    ; " + s)
    def _pad(self, need):
        while need > 0:
            n = min(need, 16)
            self.lines.append(f"    s_nop {n-1}")
            self.slot += n
            self.nops += n
            need -= n
    def _req(self, prod_slot, n):
        return prod_slot + 1 + n - self.slot
    def _cnt(self, k):
        self.count[k] = self.count.get(k, 0) + 1
    def valu(self, op, dst, *srcs, trans=False, permlane=False, extra_w=(), mods=""):
        need = 0
        rd = []
        for s in srcs: rd += regs_of(s)
        wr = regs_of(dst)
        for e in extra_w: wr += regs_of(e)
        if permlane:
            rd = rd + regs_of(dst)
        for r in rd:
            if r in self.w_mfma: need = max(need, self._req(self.w_mfma[r][0], 8))
            if (not trans) and r in self.w_trans: need = max(need, self._req(self.w_trans[r], 1))
            if permlane and r in self.w_valu: need = max(need, self._req(self.w_valu[r], 2))
        for r in wr:
            if r in self.w_mfma: need = max(need, self._req(self.w_mfma[r][0], 8))
            if r in self.r_mfmaC: need = max(need, self._req(self.r_mfmaC[r], 3))
        self._pad(need)
        ops = ", ".join([rs(dst)] + [rs(s) for s in srcs])
        self.lines.append(f"    {op} {ops}{mods}")
        for r in wr:
            self.w_valu[r] = self.slot
            if trans: self.w_trans[r] = self.slot
            else: self.w_trans.pop(r, None)
            self.w_mfma.pop(r, None)
        self.slot += 1
        self._cnt('valu')
    def mfma(self, dst, a, b, c):
        need = 0
        for r in regs_of(a) + regs_of(b):
            if r in self.w_valu: need = max(need, self._req(self.w_valu[r], 2))
            if r in self.w_mfma: need = max(need, self._req(self.w_mfma[r][0], 8))
        for r in regs_of(c):
            if r in self.w_valu: need = max(need, self._req(self.w_valu[r], 2))
            if r in self.w_mfma:
                ps, pd = self.w_mfma[r]
                if pd != c: need = max(need, self._req(ps, 6))
        if c != dst:
            for r in regs_of(dst):
                if r in self.w_mfma: need = max(need, self._req(self.w_mfma[r][0], 8))
                if r in self.r_mfmaC: need = max(need, self._req(self.r_mfmaC[r], 8))
        self._pad(need)
        self.lines.append(f"    v_mfma_f32_16x16x32_bf16 {rs(dst)}, {rs(a)}, {rs(b)}, {rs(c)}")
        for r in regs_of(c): self.r_mfmaC[r] = self.slot
        for r in regs_of(dst):
            self.w_mfma[r] = (self.slot, dst)
            self.w_valu.pop(r, None); self.w_trans.pop(r, None)
        self.slot += 1
        self._cnt('mfma')
    def _mem_haz(self, rd, wr):
        need = 0
        for r in rd + wr:
            if r in self.w_mfma: need = max(need, self._req(self.w_mfma[r][0], 8))
        for r in rd:
            if r in self.w_trans: need = max(need, self._req(self.w_trans[r], 1))
        self._pad(need)
        for r in wr:
            self.w_mfma.pop(r, None); self.w_valu.pop(r, None); self.w_trans.pop(r, None)
    def _vm_guard(self):
        if self.vm_issued - self.vm_done >= 62:
            self.wait_vm(self.vm_issued - 54)
    def vload(self, op, dst, voff, srd, soff, offset=0, flags=""):
        self._vm_guard()
        self._mem_haz(regs_of(voff), regs_of(dst))
        o = f" offset:{offset}" if offset else ""
        assert 0 <= offset < 4096
        self.lines.append(f"    {op} {rs(dst)}, {rs(voff)}, {srd}, {soff} offen{o}{flags}")
        self.slot += 1; self.vm_issued += 1; self._cnt('vmem')
        return self.vm_issued
    def vdma(self, voff, srd, soff, flags=""):
        self._vm_guard()
        self._mem_haz(regs_of(voff), [])
        self.lines.append(f"    buffer_load_dwordx4 {rs(voff)}, {srd}, {soff} offen{flags} lds")
        self.slot += 1; self.vm_issued += 1; self._cnt('vmem')
        return self.vm_issued
    def vstore(self, op, data, voff, srd, soff, offset=0, flags=""):
        self._vm_guard()
        self._mem_haz(regs_of(voff) + regs_of(data), [])
        o = f" offset:{offset}" if offset else ""
        assert 0 <= offset < 4096
        self.lines.append(f"    {op} {rs(data)}, {rs(voff)}, {srd}, {soff} offen{o}{flags}")
        self.slot += 1; self.vm_issued += 1; self._cnt('vmem')
        return self.vm_issued
    def dsread(self, op, dst, addr, offset=0):
        self._mem_haz(regs_of(addr), regs_of(dst))
        assert 0 <= offset < 65536, offset
        o = f" offset:{offset}" if offset else ""
        self.lines.append(f"    {op} {rs(dst)}, {rs(addr)}{o}")
        self.slot += 1; self.lg_issued += 1; self._cnt('ds')
        return self.lg_issued
    def dswrite(self, op, addr, data, offset=0):
        self._mem_haz(regs_of(addr) + regs_of(data), [])
        assert 0 <= offset < 65536, offset
        o = f" offset:{offset}" if offset else ""
        self.lines.append(f"    {op} {rs(addr)}, {rs(data)}{o}")
        self.slot += 1; self.lg_issued += 1; self._cnt('ds')
        return self.lg_issued
    def wait_vm(self, tok):
        if tok is None or tok <= self.vm_done: return
        n = self.vm_issued - tok
        self.lines.append(f"    s_waitcnt vmcnt({min(n,63)})")
        self.slot += 1
        self.vm_done = tok
    def wait_lg(self, tok):
        if tok is None or tok <= self.lg_done: return
        n = self.lg_issued - tok
        if n > 15:
            n = 15; tok = self.lg_issued - 15
        self.lines.append(f"    s_waitcnt lgkmcnt({n})")
        self.slot += 1
        self.lg_done = tok
    def wait_lg_all(self):
        self.wait_lg(self.lg_issued)
    def wait_vm_all(self):
        self.wait_vm(self.vm_issued)
    def salu(self, s):
        self.raw(s); self._cnt('salu')
    def barrier(self):
        self.raw("s_barrier")
    def text(self):
        return "\n".join(self.lines) + "\n"
```

```python
import sys, math
sys.path.insert(0, 'gen')
from asmlib import *

C1 = math.log2(math.e) / 16.0
KFLAGS = ""
LDS_MX = 147456
LDS_SUM = LDS_MX + 2304
LDS1 = LDS_SUM + 2304

def gen_attn():
    k = Asm()
    e = k.raw
    k.label("standalone__mha_block_cached__near_ridge_kernel")
    e("s_cmp_ge_u32 s2, 256")
    e("s_cbranch_scc1 L_attn_end")
    e("s_load_dwordx8 s[36:43], s[0:1], 0")
    e("s_load_dwordx2 s[44:45], s[0:1], 56")
    e("v_and_b32 v1, 63, v0")
    e("v_and_b32 v2, 15, v0")
    e("v_lshrrev_b32 v3, 4, v1")
    e("v_lshrrev_b32 v27, 6, v0")
    e("s_lshr_b32 s3, s2, 4")
    e("s_and_b32 s4, s2, 15")
    e("v_readfirstlane_b32 s5, v27")
    e("s_mov_b32 s33, " + f32hex(C1))
    e("s_mov_b32 s34, 0x05040100")
    e("s_mov_b32 s35, 0x07060302")
    e("v_mul_u32_u24 v4, 896, v2")
    e("v_lshl_add_u32 v4, v3, 4, v4")
    e("v_lshl_add_u32 v4, v27, 6, v4")
    e("v_lshlrev_b32 v5, 4, v1")
    e("v_add_u32 v6, 0x10000, v5")
    e("v_lshlrev_b32 v7, 3, v2")
    e("v_lshl_add_u32 v7, v3, 16, v7")
    e("v_lshlrev_b32 v8, 4, v3")
    e("v_lshl_add_u32 v8, v2, 9, v8")
    e("v_lshlrev_b32 v9, 3, v2")
    e("v_lshl_add_u32 v9, v3, 12, v9")
    e("v_xor_b32 v28, v3, v2")
    e("v_lshlrev_b32 v28, 4, v28")
    e("v_lshl_add_u32 v18, v2, 9, v28")
    e("v_lshl_add_u32 v23, v2, 10, v28")
    e("v_lshrrev_b32 v28, 1, v3")
    e("v_xor_b32 v28, v28, v2")
    e("v_lshlrev_b32 v28, 4, v28")
    e("v_lshl_add_u32 v21, v2, 10, v28")
    e("v_lshl_add_u32 v21, v27, 8, v21")
    e("v_and_b32 v28, 1, v3")
    e("v_lshl_add_u32 v21, v28, 3, v21")
    e("s_lshl_b32 s28, s5, 10")
    e("s_lshl_b32 s29, s4, 9")
    e("s_lshl_b32 s6, s5, 7")
    e("s_add_u32 s29, s29, s6")
    e("s_lshl_b32 s30, s5, 16")
    e("s_mov_b32 s31, s6")
    e("s_mul_i32 s32, s3, 1179648")
    e("s_add_u32 s32, s32, s29")
    for t in range(8):
        e(f"s_add_u32 s{48+t}, s30, {t*8192}")
    e("s_waitcnt lgkmcnt(0)")
    e("s_mul_i32 s6, s3, 129024")
    e("s_add_u32 s8, s36, s6")
    e("s_addc_u32 s9, s37, 0")
    e("s_mov_b32 s10, 129024")
    e("s_mov_b32 s11, 0x20000")
    e("s_mov_b32 s12, s42")
    e("s_mov_b32 s13, s43")
    e("s_mov_b32 s14, 3670016")
    e("s_mov_b32 s15, 0x20000")
    e("s_lshl_b32 s6, s2, 18")
    e("s_add_u32 s16, s38, s6")
    e("s_addc_u32 s17, s39, 0")
    e("s_mov_b32 s18, 262144")
    e("s_mov_b32 s19, 0x20000")
    e("s_add_u32 s20, s40, s6")
    e("s_addc_u32 s21, s41, 0")
    e("s_mov_b32 s22, 262144")
    e("s_mov_b32 s23, 0x20000")
    e("s_mov_b32 s24, s44")
    e("s_mov_b32 s25, s45")
    e("s_mov_b32 s26, 18874368")
    e("s_mov_b32 s27, 0x20000")
    SX, SWQ, SK, SV, SO = "s[8:11]", "s[12:15]", "s[16:19]", "s[20:23]", "s[24:27]"

    def dma(sp, m):
        e(f"s_add_u32 m0, s28, {m*14336 + sp*4096}")
        e(f"s_mov_b32 s46, {m*14336 + sp*256}")
        return k.vdma(V(4), SX, "s46")
    for sp in range(3):
        for m in range(9):
            dma(sp, m)
    e("s_cmp_ge_u32 s5, 2")
    e("s_cbranch_scc1 L_skipdma")
    for m in range(9):
        xtok = dma(3, m)
    k.label("L_skipdma")

    WRAW = lambda st, j: V(32 + st*16 + j*2, 2)
    WFR = lambda st, t: V(96 + st*16 + t*4, 4)
    FR = lambda m: V(176 + m*4, 4)
    ACCQ = lambda m, t: A((m*4+t)*4, 4)
    RING = lambda sl: A(144 + sl*4, 4)
    NRING = 28
    stmp = [46, 47, 58, 59]
    sidx = [0]
    def stemp():
        sidx[0] = (sidx[0] + 1) % len(stmp)
        return stmp[sidx[0]]

    wq_tok = {}
    def issue_wq(s):
        for j in range(8):
            st = stemp()
            e(f"s_add_u32 s{st}, s29, {(32*s+j)*8192}")
            wq_tok[s] = k.vload("buffer_load_dwordx2", WRAW(s % 4, j), V(7), SWQ, f"s{st}")
    k_tok = {}
    k_slot = {}
    k_next = [0]
    def issue_k(slot):
        i = k_next[0]; k_next[0] += 1
        s, t = divmod(i, 8)
        k_slot[i] = slot
        k_tok[i] = k.vload("buffer_load_dwordx4", RING(slot), V(8), SK, f"s{48+t}", offset=s*64, flags=KFLAGS)
    v_tok = {}
    v_reg = {}
    def issue_v(u, regs):
        st = stemp()
        e(f"s_add_u32 s{st}, s31, {u*16384}")
        v_reg[u] = regs
        for j in range(8):
            v_tok[u] = k.vload("buffer_load_dwordx2", regs[j], V(9), SV, f"s{st}", offset=j*512, flags=KFLAGS)

    def perm_fill(raws, out):
        fl = []
        for t in range(4):
            for i in range(4):
                hi = raws[2*i+1]; lo = raws[2*i]
                def f(t=t, i=i, hi=hi, lo=lo):
                    o = out(t)
                    k.valu("v_perm_b32", V(o[1]+i), V(hi[1] + (t >> 1)), V(lo[1] + (t >> 1)), "s35" if (t & 1) else "s34")
                fl.append(f)
        return fl

    issue_wq(0); issue_wq(1)
    ring_next = 0
    for _ in range(10):
        issue_k(ring_next); ring_next += 1
    k.wait_vm(xtok)
    k.barrier()
    issue_wq(2)

    def xread(m, s):
        off = (m*14 + s) * 1024
        if off < 65536: return k.dsread("ds_read_b128", FR(m), V(5), off)
        return k.dsread("ds_read_b128", FR(m), V(6), off - 65536)
    fr_tok = {}
    for m in range(9): fr_tok[m] = xread(m, 0)
    k.wait_vm(wq_tok[0])
    for f in perm_fill([WRAW(0, j) for j in range(8)], lambda t: WFR(0, t)): f()
    for s in range(14):
        fill = []
        if s + 3 < 14:
            fill.append(lambda s=s: issue_wq(s+3))
        def kfill():
            nonlocal ring_next
            for _ in range(2):
                if ring_next < NRING:
                    issue_k(ring_next); ring_next += 1
        fill.append(kfill)
        if s + 1 < 14:
            fill.append(lambda s=s: k.wait_vm(wq_tok[s+1]))
            fill += perm_fill([WRAW((s+1) % 4, j) for j in range(8)], lambda t, s=s: WFR((s+1) % 2, t))
        for m in range(9):
            k.wait_lg(fr_tok[m])
            for t in range(4):
                k.mfma(ACCQ(m, t), FR(m), WFR(s % 2, t), ACCQ(m, t) if s else 0)
                if m >= 1 and fill:
                    fill.pop(0)()
            if s + 1 < 14: fr_tok[m] = xread(m, s+1)
        while fill: fill.pop(0)()
    while ring_next < NRING:
        issue_k(ring_next); ring_next += 1
    k.barrier()
    k.valu("v_and_b32", V(28), 1, V(27))
    k.valu("v_lshlrev_b32", V(28), 3, V(28))
    k.valu("v_lshrrev_b32", V(29), 1, V(2))
    k.valu("v_add_u32", V(28), V(28), V(29))
    k.valu("v_lshrrev_b32", V(29), 1, V(27))
    k.valu("v_lshlrev_b32", V(29), 8, V(29))
    k.valu("v_and_b32", V(30), 1, V(2))
    k.valu("v_lshl_add_u32", V(29), V(30), 3, V(29))
    for r in range(4):
        k.valu("v_lshl_add_u32", V(30), V(3), 2, r)
        k.valu("v_xor_b32", V(31), V(28), V(30))
        k.valu("v_lshl_add_u32", V(10+r), V(31), 4, V(29))
        k.valu("v_lshl_add_u32", V(10+r), V(30), 9, V(10+r))
        k.valu("v_add_u32", V(14+r), 32768, V(10+r))
    tb = 244
    for m in range(9):
        for r in range(4):
            T = tb + ((m*4 + r) % 2) * 6
            for t in range(4):
                k.valu("v_accvgpr_read_b32", V(T+t), A((m*4+t)*4 + r))
            k.valu("v_cvt_pk_bf16_f32", V(T+4), V(T), V(T+1))
            k.valu("v_cvt_pk_bf16_f32", V(T+5), V(T+2), V(T+3))
            if m < 4: k.dswrite("ds_write_b64", V(10+r), V(T+4, 2), m*8192)
            else: k.dswrite("ds_write_b64", V(14+r), V(T+4, 2), (m-4)*8192)
    k.wait_lg_all()
    k.barrier()

    def ACCS(t, m):
        if t < 4: return V(32 + (m*4 + t)*4, 4)
        return A((m*4 + (t-4))*4, 4)
    def qaddr(s):
        k.valu("v_xor_b32", V(19), (s & 3) << 6, V(18))
        k.valu("v_add_u32", V(20), 65536, V(19))
    def qread(m, s):
        off = m*8192 + (s >> 2)*256
        if off < 65536: return k.dsread("ds_read_b128", FR(m), V(19), off)
        return k.dsread("ds_read_b128", FR(m), V(20), off - 65536)
    qaddr(0)
    for m in range(9): fr_tok[m] = qread(m, 0)
    v_next = 0
    vfree = []
    for s in range(8):
        if s + 1 < 8: qaddr(s+1)
        for m in range(9):
            k.wait_lg(fr_tok[m])
            for t in range(8):
                i = s*8 + t
                k.wait_vm(k_tok[i])
                k.mfma(ACCS(t, m), RING(k_slot[i]), FR(m), ACCS(t, m) if s else 0)
            if s + 1 < 8: fr_tok[m] = qread(m, s+1)
        for t in range(8):
            sl = k_slot[s*8 + t]
            if k_next[0] < 64: issue_k(sl)
            else: vfree.append(sl)
        while len(vfree) >= 4 and v_next < 7:
            sls = vfree[:4]; vfree = vfree[4:]
            regs = []
            for sl in sls:
                regs += [A(144 + sl*4, 2), A(144 + sl*4 + 2, 2)]
            issue_v(v_next, regs); v_next += 1
    assert v_next == 7, v_next

    NEGM = lambda m: V(212 + m)
    PSUM = lambda m: V(221 + m)
    k.valu("v_lshlrev_b32", V(28), 4, V(2))
    k.valu("v_lshl_add_u32", V(28), V(27), 2, V(28))
    k.valu("v_add_u32", V(28), LDS_MX, V(28))
    k.valu("v_lshlrev_b32", V(29), 4, V(2))
    k.valu("v_add_u32", V(29), LDS_MX, V(29))
    for m in range(9):
        mx = NEGM(m)
        vals = []
        for t in range(4):
            b = ACCS(t, m)[1]
            vals += [V(b+r) for r in range(4)]
        k.valu("v_max3_f32", mx, vals[0], vals[1], vals[2])
        k.valu("v_max3_f32", mx, vals[3], vals[4], mx)
        for i in range(5, 15, 2):
            k.valu("v_max3_f32", mx, vals[i], vals[i+1], mx)
        k.valu("v_max_f32", mx, vals[15], mx)
        for t in range(4, 8):
            b = ACCS(t, m)[1]
            T = 176 + (t-4)*4
            for r in range(4):
                k.valu("v_accvgpr_read_b32", V(T+r), A(b+r))
        for t in range(4, 8):
            T = 176 + (t-4)*4
            k.valu("v_max3_f32", mx, V(T), V(T+1), mx)
            k.valu("v_max3_f32", mx, V(T+2), V(T+3), mx)
        k.valu("v_mov_b32", V(230), mx)
        k.valu("v_permlane32_swap_b32", V(230), mx, permlane=True, extra_w=(mx,))
        k.valu("v_max_f32", mx, V(230), mx)
        k.valu("v_mov_b32", V(230), mx)
        k.valu("v_permlane16_swap_b32", V(230), mx, permlane=True, extra_w=(mx,))
        k.valu("v_max_f32", mx, V(230), mx)
        k.dswrite("ds_write_b32", V(28), mx, m*256)
    k.wait_lg_all()
    k.barrier()
    toks = []
    for m in range(9):
        toks.append(k.dsread("ds_read_b128", V(176 + m*4, 4), V(29), m*256))
    k.valu("v_mov_b32", V(231), "s33")
    for m in range(9):
        k.wait_lg(toks[m])
        T = 176 + m*4
        k.valu("v_max3_f32", NEGM(m), V(T), V(T+1), V(T+2))
        k.valu("v_max_f32", NEGM(m), V(T+3), NEGM(m))
        k.valu("v_mul_f32", NEGM(m), V(231), NEGM(m))
        k.valu("v_sub_f32", NEGM(m), 0, NEGM(m))
    tsel = 0
    for m in range(9):
        if m == 0: k.valu("v_mov_b32", V(22), V(21))
        else: k.valu("v_add_u32", V(22), m*16384, V(21))
        first = True
        for t in range(8):
            if t < 4:
                b = ACCS(t, m)[1]
                S = [V(b+r) for r in range(4)]
            else:
                T = 176 + (tsel % 4)*4; tsel += 1
                ab = ACCS(t, m)[1]
                for r in range(4):
                    k.valu("v_accvgpr_read_b32", V(T+r), A(ab+r))
                S = [V(T+r) for r in range(4)]
            for r in range(4):
                k.valu("v_fma_f32", S[r], S[r], "s33", NEGM(m))
            for r in range(4):
                k.valu("v_exp_f32", S[r], S[r], trans=True)
            P = 232 + (t % 4)*2
            AD = 240 + (t % 4)
            k.valu("v_xor_b32", V(AD), t << 5, V(22))
            k.valu("v_cvt_pk_bf16_f32", V(P), S[0], S[1])
            k.valu("v_cvt_pk_bf16_f32", V(P+1), S[2], S[3])
            if first:
                k.valu("v_add_f32", PSUM(m), S[0], S[1]); first = False
            else:
                k.valu("v_add_f32", PSUM(m), S[0], PSUM(m))
                k.valu("v_add_f32", PSUM(m), S[1], PSUM(m))
            k.valu("v_add_f32", PSUM(m), S[2], PSUM(m))
            k.valu("v_add_f32", PSUM(m), S[3], PSUM(m))
            k.dswrite("ds_write_b64", V(AD), V(P, 2))
        issue_v(7 + m, [V(32 + m*16 + 2*j, 2) for j in range(8)])
    k.valu("v_mul_u32_u24", V(28), 576, V(27))
    k.valu("v_lshl_add_u32", V(28), V(2), 2, V(28))
    k.valu("v_add_u32", V(28), LDS_SUM, V(28))
    for m in range(9):
        ps = PSUM(m)
        k.valu("v_mov_b32", V(230), ps)
        k.valu("v_permlane32_swap_b32", V(230), ps, permlane=True, extra_w=(ps,))
        k.valu("v_add_f32", ps, V(230), ps)
        k.valu("v_mov_b32", V(230), ps)
        k.valu("v_permlane16_swap_b32", V(230), ps, permlane=True, extra_w=(ps,))
        k.valu("v_add_f32", ps, V(230), ps)
        k.dswrite("ds_write_b32", V(28), ps, m*64)
    k.wait_lg_all()
    k.barrier()

    ACCO = lambda m, t: A((m*4+t)*4, 4)
    VFR = lambda st, t: V(212 + st*16 + t*4, 4)
    def paddr(u):
        k.valu("v_xor_b32", V(24), (u & 3) << 6, V(23))
        k.valu("v_add_u32", V(25), 65536, V(24))
        k.valu("v_add_u32", V(26), 131072, V(24))
    def pread(m, u):
        off = m*16384 + (u >> 2)*256
        return k.dsread("ds_read_b128", FR(m), V(24 + off // 65536), off % 65536)
    def vprep(u):
        fl = [lambda: k.wait_vm(v_tok[u])]
        regs = v_reg[u]
        if regs[0][0] == 'a':
            tmp = [244, 246, 248, 250, 252, 254, 10, 12]
            for j in range(8):
                for q in range(2):
                    fl.append(lambda j=j, q=q: k.valu("v_accvgpr_read_b32", V(tmp[j]+q), A(regs[j][1]+q)))
            raws = [V(tmp[j], 2) for j in range(8)]
        else:
            raws = regs
        fl += perm_fill(raws, lambda t: VFR(u % 2, t))
        return fl
    paddr(0)
    for m in range(9): fr_tok[m] = pread(m, 0)
    for f in vprep(0): f()
    for u in range(16):
        fill = []
        if u + 1 < 16:
            paddr(u+1)
            fill = vprep(u+1)
        for m in range(9):
            k.wait_lg(fr_tok[m])
            for t in range(4):
                k.mfma(ACCO(m, t), FR(m), VFR(u % 2, t), ACCO(m, t) if u else 0)
                if fill: fill.pop(0)()
            if u + 1 < 16: fr_tok[m] = pread(m, u+1)
        while fill: fill.pop(0)()

    k.valu("v_lshlrev_b32", V(28), 4, V(3))
    k.valu("v_add_u32", V(28), LDS_SUM, V(28))
    k.valu("v_lshlrev_b32", V(29), 3, V(2))
    k.valu("v_lshl_add_u32", V(29), V(3), 15, V(29))
    for m in range(9):
        for w in range(4):
            k.dsread("ds_read_b128", V(32 + (m*4+w)*4, 4), V(28), w*576 + m*64)
    k.wait_lg_all()
    for m in range(9):
        b = 32 + m*16
        for r in range(4):
            k.valu("v_add_f32", V(b+r), V(b+r), V(b+4+r))
            k.valu("v_add_f32", V(b+8+r), V(b+8+r), V(b+12+r))
        for r in range(4):
            k.valu("v_add_f32", V(b+r), V(b+r), V(b+8+r))
        for r in range(4):
            k.valu("v_rcp_f32", V(b+r), V(b+r), trans=True)
    for m in range(9):
        b = 32 + m*16
        for r in range(4):
            T = 176 + ((m*4 + r) % 4) * 6
            for t in range(4):
                k.valu("v_accvgpr_read_b32", V(T+t), A((m*4+t)*4 + r))
            for t in range(4):
                k.valu("v_mul_f32", V(T+t), V(T+t), V(b+r))
            k.valu("v_cvt_pk_bf16_f32", V(T+4), V(T), V(T+1))
            k.valu("v_cvt_pk_bf16_f32", V(T+5), V(T+2), V(T+3))
            st = stemp()
            e(f"s_add_u32 s{st}, s32, {(16*m + r)*8192}")
            k.vstore("buffer_store_dwordx2", V(T+4, 2), V(29), SO, f"s{st}")
    k.label("L_attn_end")
    e("s_endpgm")
    return k

def gen_oproj():
    k = Asm()
    e = k.raw
    k.label("oproj_kernel")
    e("s_cmp_ge_u32 s2, 256")
    e("s_cbranch_scc1 L_op_end")
    e("s_and_b32 s3, s2, 7")
    e("s_lshl_b32 s3, s3, 5")
    e("s_lshr_b32 s4, s2, 3")
    e("s_add_u32 s3, s3, s4")
    e("s_cmp_ge_u32 s3, 252")
    e("s_cbranch_scc1 L_op_end")
    e("s_load_dwordx4 s[36:39], s[0:1], 32")
    e("s_load_dwordx2 s[40:41], s[0:1], 56")
    e("s_mul_i32 s4, s3, 9363")
    e("s_lshr_b32 s4, s4, 16")
    e("s_mul_i32 s5, s4, 7")
    e("s_sub_u32 s5, s3, s5")
    e("v_and_b32 v1, 63, v0")
    e("v_and_b32 v2, 15, v0")
    e("v_lshrrev_b32 v3, 4, v1")
    e("v_lshrrev_b32 v4, 6, v0")
    e("s_mov_b32 s34, 0x05040100")
    e("s_mov_b32 s35, 0x07060302")
    e("v_lshlrev_b32 v5, 13, v2")
    e("v_lshl_add_u32 v5, v3, 4, v5")
    e("v_lshl_add_u32 v5, v4, 10, v5")
    e("v_mul_u32_u24 v6, 7168, v3")
    e("v_lshl_add_u32 v6, v2, 3, v6")
    e("s_mov_b32 s6, 458752")
    e("v_mul_lo_u32 v7, s6, v4")
    e("v_add_u32 v6, v6, v7")
    e("v_add_u32 v7, 3584, v6")
    e("s_lshl_b32 s6, s4, 19")
    for m in range(4):
        e(f"s_add_u32 s{48+m}, s6, {m*16*8192}")
    e("s_lshl_b32 s7, s5, 7")
    e("s_waitcnt lgkmcnt(0)")
    e("s_mov_b32 s8, s40"); e("s_mov_b32 s9, s41"); e("s_mov_b32 s10, 18874368"); e("s_mov_b32 s11, 0x20000")
    e("s_mov_b32 s12, s36"); e("s_mov_b32 s13, s37"); e("s_mov_b32 s14, 3670016"); e("s_mov_b32 s15, 0x20000")
    e("s_mov_b32 s16, s38"); e("s_mov_b32 s17, s39"); e("s_mov_b32 s18, 2064384"); e("s_mov_b32 s19, 0x20000")
    SA, SB, SOUT = "s[8:11]", "s[12:15]", "s[16:19]"
    NS = 5
    AFR = lambda st, m: V(96 + st*32 + m*4, 4)
    BRAW = lambda st, j: V(96 + st*32 + 16 + j*2, 2)
    BFR = lambda st, t: V(16 + st*8*0 + t*4, 4) if False else V(16 + (st % 1)*16 + t*4, 4)
    ACC = lambda m, t: V(32 + (m*4+t)*4, 4)
    tokA = {}; tokB = {}
    sidx = [0]
    def stemp():
        sidx[0] = (sidx[0] + 1) % 4
        return 52 + sidx[0]
    def issue(s):
        st = s % NS
        sb = stemp()
        e(f"s_add_u32 s{sb}, s7, {32*s*896}")
        for j in range(8):
            if j < 4: tokB[s] = k.vload("buffer_load_dwordx2", BRAW(st, j), V(6), SB, f"s{sb}", offset=j*896)
            else: tokB[s] = k.vload("buffer_load_dwordx2", BRAW(st, j), V(7), SB, f"s{sb}", offset=(j-4)*896)
        for m in range(4):
            tokA[s] = k.vload("buffer_load_dwordx4", AFR(st, m), V(5), SA, f"s{48+m}", offset=s*64)
    for s in range(NS): issue(s)
    for s in range(16):
        st = s % NS
        k.wait_vm(tokB[s])
        for t in range(4):
            for i in range(4):
                hi = BRAW(st, 2*i+1); lo = BRAW(st, 2*i)
                k.valu("v_perm_b32", V(16 + t*4 + i), V(hi[1] + (t >> 1)), V(lo[1] + (t >> 1)), "s35" if (t & 1) else "s34")
        k.wait_vm(tokA[s])
        for m in range(4):
            for t in range(4):
                k.mfma(ACC(m, t), AFR(st, m), V(16 + t*4, 4), ACC(m, t) if s else 0)
        if s + NS < 16: issue(s + NS)
    k.valu("v_lshlrev_b32", V(8), 4, V(1))
    k.valu("v_lshl_add_u32", V(8), V(4), 14, V(8))
    for m in range(4):
        for t in range(4):
            k.dswrite("ds_write_b128", V(8), ACC(m, t), (m*4+t)*1024)
    k.wait_lg_all()
    k.barrier()
    k.valu("v_lshrrev_b32", V(9), 1, V(4))
    k.valu("v_and_b32", V(10), 1, V(4))
    k.valu("v_lshlrev_b32", V(8), 4, V(1))
    k.valu("v_lshl_add_u32", V(8), V(9), 12, V(8))
    k.valu("v_lshl_add_u32", V(8), V(10), 3, V(8))
    k.valu("v_add_u32", V(11), 65536, V(8))
    for t in range(4):
        for w in range(8):
            off = w*16384 + t*1024
            k.dsread("ds_read_b64", V(96 + (t*8 + w)*2, 2), V(8) if off < 65536 else V(11), off % 65536)
    k.wait_lg_all()
    for t in range(4):
        b = 96 + t*16
        for q in range(2):
            k.valu("v_add_f32", V(b+q), V(b+q), V(b+2+q))
            k.valu("v_add_f32", V(b+4+q), V(b+4+q), V(b+6+q))
            k.valu("v_add_f32", V(b+8+q), V(b+8+q), V(b+10+q))
            k.valu("v_add_f32", V(b+12+q), V(b+12+q), V(b+14+q))
        for q in range(2):
            k.valu("v_add_f32", V(b+q), V(b+q), V(b+4+q))
            k.valu("v_add_f32", V(b+8+q), V(b+8+q), V(b+12+q))
        for q in range(2):
            k.valu("v_add_f32", V(b+q), V(b+q), V(b+8+q))
    k.valu("v_lshlrev_b32", V(12), 4, V(9))
    k.valu("v_lshl_add_u32", V(12), V(3), 2, V(12))
    k.valu("v_lshl_add_u32", V(12), V(10), 1, V(12))
    k.valu("v_mul_u32_u24", V(12), 896, V(12))
    k.valu("v_lshl_add_u32", V(12), V(2), 3, V(12))
    e("s_mul_i32 s6, s4, 57344")
    e("s_add_u32 s6, s6, s7")
    for q in range(2):
        k.valu("v_cvt_pk_bf16_f32", V(16+q*2), V(96+q), V(112+q))
        k.valu("v_cvt_pk_bf16_f32", V(17+q*2), V(128+q), V(144+q))
        k.vstore("buffer_store_dwordx2", V(16+q*2, 2), V(12), SOUT, "s6", offset=q*896)
    k.label("L_op_end")
    e("s_endpgm")
    return k

HEADER = """; Kernarg layout for this problem (64 bytes, ptrs only, base s[0:1]):
;   offset   0: d_in[0] x  shape=(16, 144, 448) dtype=bfloat16 strides=(129024, 896, 2) contiguous=True
;   offset   8: d_in[1] k_cache  shape=(16, 16, 512, 256) dtype=bfloat16 strides=(4194304, 262144, 512, 2) contiguous=True
;   offset  16: d_in[2] v_cache  shape=(16, 16, 512, 256) dtype=bfloat16 strides=(4194304, 262144, 512, 2) contiguous=True
;   offset  24: d_in[3] wq  shape=(448, 4096) dtype=bfloat16 strides=(8192, 2) contiguous=True
;   offset  32: d_in[4] wo  shape=(4096, 448) dtype=bfloat16 strides=(896, 2) contiguous=True
;   offset  40: d_out     shape=(16, 144, 448) dtype=bfloat16 (2 bytes/elem)
;   offset  48: d_debug   256 bytes
;   offset  56: d_ws      268435456 bytes workspace
; Generated by a Python generator script (hand-designed schedule).
; Launch 1: fused Q-projection + attention per (batch, head); writes O (bf16) to d_ws.
; Launch 2: output projection O @ Wo.
; @launch kernel=standalone__mha_block_cached__near_ridge_kernel grid=(256,1,1) block=(256,1,1) lds=%d
; @launch kernel=oproj_kernel grid=(256,1,1) block=(512,1,1) lds=131072
.amdgcn_target "amdgcn-amd-amdhsa--gfx950"
.text
""" % LDS1

def main():
    a = gen_attn(); o = gen_oproj()
    s = HEADER
    s += ".globl standalone__mha_block_cached__near_ridge_kernel\n.p2align 8\n.type standalone__mha_block_cached__near_ridge_kernel,@function\n"
    s += a.text()
    s += ".globl oproj_kernel\n.p2align 8\n.type oproj_kernel,@function\n"
    s += o.text()
    s += """.section .rodata,"a"
.p2align 6
.amdhsa_kernel standalone__mha_block_cached__near_ridge_kernel
  .amdhsa_next_free_vgpr 512
  .amdhsa_next_free_sgpr 96
  .amdhsa_accum_offset 256
  .amdhsa_group_segment_fixed_size 0
  .amdhsa_kernarg_size 64
  .amdhsa_user_sgpr_count 2
  .amdhsa_user_sgpr_kernarg_segment_ptr 1
  .amdhsa_system_sgpr_workgroup_id_x 1
.end_amdhsa_kernel
.p2align 6
.amdhsa_kernel oproj_kernel
  .amdhsa_next_free_vgpr 256
  .amdhsa_next_free_sgpr 96
  .amdhsa_accum_offset 256
  .amdhsa_group_segment_fixed_size 0
  .amdhsa_kernarg_size 64
  .amdhsa_user_sgpr_count 2
  .amdhsa_user_sgpr_kernarg_segment_ptr 1
  .amdhsa_system_sgpr_workgroup_id_x 1
.end_amdhsa_kernel
"""
    out = sys.argv[1] if len(sys.argv) > 1 else "standalone__mha_block_cached__near_ridge.s"
    open(out, "w").write(s)
    print("attn counts", a.count, "nops", a.nops)
    print("oproj counts", o.count, "nops", o.nops)

main()
```

```python
import sys, math
sys.path.insert(0, 'gen')
from asmlib import *

C1 = math.log2(math.e) / 16.0
import os
DBG = int(os.environ.get('DBG','0'))
DBGWG = int(os.environ.get('DBGWG','37'))
KFLAGS = os.environ.get('KFLAGS',' nt')
LDS_MX = 147456
LDS_SUM = LDS_MX + 2304
LDS_OST = LDS_SUM + 2304
LDS1 = LDS_OST + 8192

def add_stamp(k):
    k.nst = 0
    def stamp():
        if not DBG: return
        k.raw("s_memtime s[62:63]")
        k.raw("s_waitcnt lgkmcnt(0)")
        k.raw(f"s_mov_b32 s{64+k.nst}, s62")
        k.nst += 1
    k.stamp = stamp
    def dump(waveS, base):
        if not DBG: return
        k.raw(f"s_cmp_lg_u32 s2, {DBGWG}")
        k.raw(f"s_cbranch_scc1 L_nodump{base}")
        k.raw("s_load_dwordx2 s[60:61], s[0:1], 48")
        k.raw("s_waitcnt lgkmcnt(0)")
        k.raw("s_mov_b32 s62, 256")
        k.raw("s_mov_b32 s63, 0x20000")
        k.raw(f"v_mov_b32 v1, 0")
        k.raw(f"s_cmp_lg_u32 {waveS}, 0")
        k.raw(f"s_cbranch_scc1 L_nodump{base}")
        for i in range(k.nst):
            k.raw(f"s_sub_u32 s58, s{64+i}, s64")
            k.raw(f"v_mov_b32 v2, s58")
            k.raw(f"buffer_store_dword v2, v1, s[60:63], 0 offen offset:{(base+i)*4}")
        k.raw("s_waitcnt vmcnt(0)")
        k.label(f"L_nodump{base}")
    k.dump = dump

def gen_attn():
    k = Asm()
    add_stamp(k)
    e = k.raw
    k.label("standalone__mha_block_cached__near_ridge_kernel")
    e("s_cmp_ge_u32 s2, 256")
    e("s_cbranch_scc1 L_attn_end")
    k.stamp()
    e("s_load_dwordx8 s[36:43], s[0:1], 0")
    e("s_load_dwordx2 s[44:45], s[0:1], 56")
    e("v_and_b32 v1, 63, v0")
    e("v_and_b32 v2, 15, v0")
    e("v_lshrrev_b32 v3, 4, v1")
    e("v_lshrrev_b32 v27, 6, v0")
    e("s_lshr_b32 s3, s2, 4")
    e("s_and_b32 s4, s2, 15")
    e("v_readfirstlane_b32 s5, v27")
    e("s_mov_b32 s33, " + f32hex(C1))
    e("s_mov_b32 s34, 0x05040100")
    e("s_mov_b32 s35, 0x07060302")
    e("v_lshrrev_b32 v28, 1, v3")
    e("v_xor_b32 v29, v3, v28")
    e("v_and_b32 v29, 1, v29")
    e("v_lshl_or_b32 v29, v29, 1, v28")
    e("v_and_b32 v30, 3, v1")
    e("v_xor_b32 v29, v29, v30")
    e("v_lshrrev_b32 v30, 2, v1")
    e("v_mul_u32_u24 v4, 896, v30")
    e("v_lshl_add_u32 v4, v29, 4, v4")
    e("v_lshl_add_u32 v4, v27, 6, v4")
    e("v_lshrrev_b32 v30, 2, v2")
    e("v_lshrrev_b32 v28, 1, v30")
    e("v_xor_b32 v29, v30, v28")
    e("v_and_b32 v29, 1, v29")
    e("v_lshl_or_b32 v29, v29, 1, v28")
    e("v_xor_b32 v29, v29, v3")
    e("v_lshlrev_b32 v5, 6, v2")
    e("v_lshl_add_u32 v5, v29, 4, v5")
    e("v_add_u32 v6, 0x10000, v5")
    e("v_lshlrev_b32 v7, 3, v2")
    e("v_lshl_add_u32 v7, v3, 16, v7")
    e("v_and_b32 v28, 3, v1")
    e("v_lshlrev_b32 v8, 4, v28")
    e("v_lshrrev_b32 v28, 2, v1")
    e("v_lshl_add_u32 v8, v28, 9, v8")
    e("v_lshlrev_b32 v0, 4, v2")
    e("v_lshl_add_u32 v0, v3, 2, v0")
    e("v_lshlrev_b32 v9, 3, v2")
    e("v_lshl_add_u32 v9, v3, 12, v9")
    e("v_xor_b32 v28, v3, v2")
    e("v_lshlrev_b32 v28, 4, v28")
    e("v_lshl_add_u32 v18, v2, 9, v28")
    e("v_lshl_add_u32 v23, v2, 10, v28")
    e("v_lshrrev_b32 v28, 1, v3")
    e("v_xor_b32 v28, v28, v2")
    e("v_lshlrev_b32 v28, 4, v28")
    e("v_lshl_add_u32 v21, v2, 10, v28")
    e("v_lshl_add_u32 v21, v27, 8, v21")
    e("v_and_b32 v28, 1, v3")
    e("v_lshl_add_u32 v21, v28, 3, v21")
    e("s_lshl_b32 s28, s5, 10")
    e("s_lshl_b32 s29, s4, 9")
    e("s_lshl_b32 s6, s5, 7")
    e("s_add_u32 s29, s29, s6")
    e("s_lshl_b32 s30, s5, 16")
    e("s_mov_b32 s31, s6")
    e("s_mul_i32 s32, s3, 1179648")
    e("s_lshl_b32 s6, s4, 13")
    e("s_add_u32 s32, s32, s6")
    e("s_lshl_b32 s6, s5, 11")
    e("s_add_u32 s32, s32, s6")
    for t in range(8):
        e(f"s_add_u32 s{48+t}, s30, {t*8192}")
    e("s_waitcnt lgkmcnt(0)")
    e("s_mul_i32 s6, s3, 129024")
    e("s_add_u32 s8, s36, s6")
    e("s_addc_u32 s9, s37, 0")
    e("s_mov_b32 s10, 129024")
    e("s_mov_b32 s11, 0x20000")
    e("s_mov_b32 s12, s42")
    e("s_mov_b32 s13, s43")
    e("s_mov_b32 s14, 3670016")
    e("s_mov_b32 s15, 0x20000")
    e("s_lshl_b32 s6, s2, 18")
    e("s_add_u32 s16, s38, s6")
    e("s_addc_u32 s17, s39, 0")
    e("s_mov_b32 s18, 262144")
    e("s_mov_b32 s19, 0x20000")
    e("s_add_u32 s20, s40, s6")
    e("s_addc_u32 s21, s41, 0")
    e("s_mov_b32 s22, 262144")
    e("s_mov_b32 s23, 0x20000")
    e("s_mov_b32 s24, s44")
    e("s_mov_b32 s25, s45")
    e("s_mov_b32 s26, 18874368")
    e("s_mov_b32 s27, 0x20000")
    SX, SWQ, SK, SV, SO = "s[8:11]", "s[12:15]", "s[16:19]", "s[20:23]", "s[24:27]"

    def dma(sp, m):
        e(f"s_add_u32 m0, s28, {m*14336 + sp*4096}")
        e(f"s_mov_b32 s46, {m*14336 + sp*256}")
        return k.vdma(V(4), SX, "s46")
    for sp in range(3):
        for m in range(9):
            dma(sp, m)
    e("s_cmp_ge_u32 s5, 2")
    e("s_cbranch_scc1 L_skipdma")
    for m in range(9):
        xtok = dma(3, m)
    k.label("L_skipdma")

    WRAW = lambda st, j: V(32 + st*16 + j*2, 2)
    WFR = lambda st, t: V(96 + st*16 + t*4, 4)
    FR = lambda m: V(176 + m*4, 4)
    ACCQ = lambda m, t: A((m*4+t)*4, 4)
    RING = lambda sl: A(144 + sl*4, 4)
    NRING = 28
    stmp = [46, 47, 58, 59]
    sidx = [0]
    def stemp():
        sidx[0] = (sidx[0] + 1) % len(stmp)
        return stmp[sidx[0]]

    wq_tok = {}
    def issue_wq(s):
        for j in range(8):
            st = stemp()
            e(f"s_add_u32 s{st}, s29, {(32*s+j)*8192}")
            wq_tok[s] = k.vload("buffer_load_dwordx2", WRAW(s % 4, j), V(7), SWQ, f"s{st}")
    k_tok = {}
    k_slot = {}
    k_next = [0]
    korder = [(2*sp + ee, t) for sp in range(4) for t in range(8) for ee in range(2)]
    def issue_k(slot):
        s_, t = korder[k_next[0]]; k_next[0] += 1
        i = s_*8 + t
        k_slot[i] = slot
        k_tok[i] = k.vload("buffer_load_dwordx4", RING(slot), V(8), SK, f"s{48+t}", offset=s_*64, flags=KFLAGS)
    kp_tok = {}
    def kperm(i):
        k.wait_vm(k_tok[i])
        b = RING(k_slot[i])[1]
        for q in range(4):
            k._mem_haz([], [])
            k.lines.append(f"    ds_bpermute_b32 a{b+q}, v0, a{b+q}")
            k.slot += 1; k.lg_issued += 1
        kp_tok[i] = k.lg_issued
    v_tok = {}
    v_reg = {}
    def issue_v(u, regs):
        st = stemp()
        e(f"s_add_u32 s{st}, s31, {u*16384}")
        v_reg[u] = regs
        for j in range(8):
            v_tok[u] = k.vload("buffer_load_dwordx2", regs[j], V(9), SV, f"s{st}", offset=j*512, flags=KFLAGS)

    def perm_fill(raws, out):
        fl = []
        for t in range(4):
            for i in range(4):
                hi = raws[2*i+1]; lo = raws[2*i]
                def f(t=t, i=i, hi=hi, lo=lo):
                    o = out(t)
                    k.valu("v_perm_b32", V(o[1]+i), V(hi[1] + (t >> 1)), V(lo[1] + (t >> 1)), "s35" if (t & 1) else "s34")
                fl.append(f)
        return fl

    issue_wq(0); issue_wq(1)
    ring_next = 0
    for _ in range(10):
        issue_k(ring_next); ring_next += 1
    k.wait_vm(xtok)
    k.barrier()
    k.stamp()
    issue_wq(2)

    def xread(m, s):
        off = (m*14 + s) * 1024
        if off < 65536: return k.dsread("ds_read_b128", FR(m), V(5), off)
        return k.dsread("ds_read_b128", FR(m), V(6), off - 65536)
    fr_tok = {}
    for m in range(9): fr_tok[m] = xread(m, 0)
    k.wait_vm(wq_tok[0])
    for f in perm_fill([WRAW(0, j) for j in range(8)], lambda t: WFR(0, t)): f()
    for s in range(14):
        fill = []
        if s + 3 < 14:
            fill.append(lambda s=s: issue_wq(s+3))
        def kfill():
            nonlocal ring_next
            for _ in range(2):
                if ring_next < NRING:
                    issue_k(ring_next); ring_next += 1
        fill.append(kfill)
        if s + 1 < 14:
            fill.append(lambda s=s: k.wait_vm(wq_tok[s+1]))
            fill += perm_fill([WRAW((s+1) % 4, j) for j in range(8)], lambda t, s=s: WFR((s+1) % 2, t))
        for m in range(9):
            k.wait_lg(fr_tok[m])
            for t in range(4):
                k.mfma(ACCQ(m, t), FR(m), WFR(s % 2, t), ACCQ(m, t) if s else 0)
                if m >= 1 and fill:
                    fill.pop(0)()
            if s + 1 < 14: fr_tok[m] = xread(m, s+1)
        while fill: fill.pop(0)()
    while ring_next < NRING:
        issue_k(ring_next); ring_next += 1
    k.stamp()
    k.barrier()
    k.valu("v_and_b32", V(28), 1, V(27))
    k.valu("v_lshlrev_b32", V(28), 3, V(28))
    k.valu("v_lshrrev_b32", V(29), 1, V(2))
    k.valu("v_add_u32", V(28), V(28), V(29))
    k.valu("v_lshrrev_b32", V(29), 1, V(27))
    k.valu("v_lshlrev_b32", V(29), 8, V(29))
    k.valu("v_and_b32", V(30), 1, V(2))
    k.valu("v_lshl_add_u32", V(29), V(30), 3, V(29))
    for r in range(4):
        k.valu("v_lshl_add_u32", V(30), V(3), 2, r)
        k.valu("v_xor_b32", V(31), V(28), V(30))
        k.valu("v_lshl_add_u32", V(10+r), V(31), 4, V(29))
        k.valu("v_lshl_add_u32", V(10+r), V(30), 9, V(10+r))
        k.valu("v_add_u32", V(14+r), 32768, V(10+r))
    tb = 244
    for m in range(9):
        for r in range(4):
            T = tb + ((m*4 + r) % 2) * 6
            for t in range(4):
                k.valu("v_accvgpr_read_b32", V(T+t), A((m*4+t)*4 + r))
            k.valu("v_cvt_pk_bf16_f32", V(T+4), V(T), V(T+1))
            k.valu("v_cvt_pk_bf16_f32", V(T+5), V(T+2), V(T+3))
            if m < 4: k.dswrite("ds_write_b64", V(10+r), V(T+4, 2), m*8192)
            else: k.dswrite("ds_write_b64", V(14+r), V(T+4, 2), (m-4)*8192)
    k.wait_lg_all()
    k.barrier()
    k.stamp()

    def ACCS(t, m):
        if t < 4: return V(32 + (m*4 + t)*4, 4)
        return A((m*4 + (t-4))*4, 4)
    def qaddr(s):
        k.valu("v_xor_b32", V(19), (s & 3) << 6, V(18))
        k.valu("v_add_u32", V(20), 65536, V(19))
    def qread(m, s):
        off = m*8192 + (s >> 2)*256
        if off < 65536: return k.dsread("ds_read_b128", FR(m), V(19), off)
        return k.dsread("ds_read_b128", FR(m), V(20), off - 65536)
    qaddr(0)
    for t in range(8): kperm(t)
    for m in range(9): fr_tok[m] = qread(m, 0)
    v_next = 0
    vfree = []
    for s in range(8):
        if s + 1 < 8: qaddr(s+1)
        for m in range(9):
            k.wait_lg(fr_tok[m])
            for t in range(8):
                i = s*8 + t
                k.wait_lg(kp_tok[i])
                k.mfma(ACCS(t, m), RING(k_slot[i]), FR(m), ACCS(t, m) if s else 0)
            if s + 1 < 8:
                fr_tok[m] = qread(m, s+1)
                if m < 8: kperm((s+1)*8 + m)
        for t in range(8):
            sl = k_slot[s*8 + t]
            if k_next[0] < 64: issue_k(sl)
            else: vfree.append(sl)
        while len(vfree) >= 4 and v_next < 7:
            sls = vfree[:4]; vfree = vfree[4:]
            regs = []
            for sl in sls:
                regs += [A(144 + sl*4, 2), A(144 + sl*4 + 2, 2)]
            issue_v(v_next, regs); v_next += 1
    assert v_next == 7, v_next

    k.stamp()
    NEGM = lambda m: V(212 + m)
    PSUM = lambda m: V(221 + m)
    k.valu("v_lshlrev_b32", V(28), 4, V(2))
    k.valu("v_lshl_add_u32", V(28), V(27), 2, V(28))
    k.valu("v_add_u32", V(28), LDS_MX, V(28))
    k.valu("v_lshlrev_b32", V(29), 4, V(2))
    k.valu("v_add_u32", V(29), LDS_MX, V(29))
    for m in range(9):
        mx = NEGM(m)
        vals = []
        for t in range(4):
            b = ACCS(t, m)[1]
            vals += [V(b+r) for r in range(4)]
        k.valu("v_max3_f32", mx, vals[0], vals[1], vals[2])
        k.valu("v_max3_f32", mx, vals[3], vals[4], mx)
        for i in range(5, 15, 2):
            k.valu("v_max3_f32", mx, vals[i], vals[i+1], mx)
        k.valu("v_max_f32", mx, vals[15], mx)
        for t in range(4, 8):
            b = ACCS(t, m)[1]
            T = 176 + (t-4)*4
            for r in range(4):
                k.valu("v_accvgpr_read_b32", V(T+r), A(b+r))
        for t in range(4, 8):
            T = 176 + (t-4)*4
            k.valu("v_max3_f32", mx, V(T), V(T+1), mx)
            k.valu("v_max3_f32", mx, V(T+2), V(T+3), mx)
        k.valu("v_mov_b32", V(230), mx)
        k.valu("v_permlane32_swap_b32", V(230), mx, permlane=True, extra_w=(mx,))
        k.valu("v_max_f32", mx, V(230), mx)
        k.valu("v_mov_b32", V(230), mx)
        k.valu("v_permlane16_swap_b32", V(230), mx, permlane=True, extra_w=(mx,))
        k.valu("v_max_f32", mx, V(230), mx)
        k.dswrite("ds_write_b32", V(28), mx, m*256)
    k.wait_lg_all()
    k.barrier()
    k.stamp()
    toks = []
    for m in range(9):
        toks.append(k.dsread("ds_read_b128", V(176 + m*4, 4), V(29), m*256))
    k.valu("v_mov_b32", V(231), "s33")
    for m in range(9):
        k.wait_lg(toks[m])
        T = 176 + m*4
        k.valu("v_max3_f32", NEGM(m), V(T), V(T+1), V(T+2))
        k.valu("v_max_f32", NEGM(m), V(T+3), NEGM(m))
        k.valu("v_mul_f32", NEGM(m), V(231), NEGM(m))
        k.valu("v_sub_f32", NEGM(m), 0, NEGM(m))
    tsel = 0
    for m in range(9):
        if m == 0: k.valu("v_mov_b32", V(22), V(21))
        else: k.valu("v_add_u32", V(22), m*16384, V(21))
        first = True
        for t in range(8):
            if t < 4:
                b = ACCS(t, m)[1]
                S = [V(b+r) for r in range(4)]
            else:
                T = 176 + (tsel % 4)*4; tsel += 1
                ab = ACCS(t, m)[1]
                for r in range(4):
                    k.valu("v_accvgpr_read_b32", V(T+r), A(ab+r))
                S = [V(T+r) for r in range(4)]
            for r in range(4):
                k.valu("v_fma_f32", S[r], S[r], "s33", NEGM(m))
            for r in range(4):
                k.valu("v_exp_f32", S[r], S[r], trans=True)
            P = 232 + (t % 4)*2
            AD = 240 + (t % 4)
            k.valu("v_xor_b32", V(AD), t << 5, V(22))
            k.valu("v_cvt_pk_bf16_f32", V(P), S[0], S[1])
            k.valu("v_cvt_pk_bf16_f32", V(P+1), S[2], S[3])
            if first:
                k.valu("v_add_f32", PSUM(m), S[0], S[1]); first = False
            else:
                k.valu("v_add_f32", PSUM(m), S[0], PSUM(m))
                k.valu("v_add_f32", PSUM(m), S[1], PSUM(m))
            k.valu("v_add_f32", PSUM(m), S[2], PSUM(m))
            k.valu("v_add_f32", PSUM(m), S[3], PSUM(m))
            k.dswrite("ds_write_b64", V(AD), V(P, 2))
        issue_v(7 + m, [V(32 + m*16 + 2*j, 2) for j in range(8)])
    k.valu("v_mul_u32_u24", V(28), 576, V(27))
    k.valu("v_lshl_add_u32", V(28), V(2), 2, V(28))
    k.valu("v_add_u32", V(28), LDS_SUM, V(28))
    for m in range(9):
        ps = PSUM(m)
        k.valu("v_mov_b32", V(230), ps)
        k.valu("v_permlane32_swap_b32", V(230), ps, permlane=True, extra_w=(ps,))
        k.valu("v_add_f32", ps, V(230), ps)
        k.valu("v_mov_b32", V(230), ps)
        k.valu("v_permlane16_swap_b32", V(230), ps, permlane=True, extra_w=(ps,))
        k.valu("v_add_f32", ps, V(230), ps)
        k.dswrite("ds_write_b32", V(28), ps, m*64)
    k.wait_lg_all()
    k.barrier()
    k.stamp()

    ACCO = lambda m, t: A((m*4+t)*4, 4)
    VFR = lambda st, t: V(212 + st*16 + t*4, 4)
    def paddr(u):
        k.valu("v_xor_b32", V(24), (u & 3) << 6, V(23))
        k.valu("v_add_u32", V(25), 65536, V(24))
        k.valu("v_add_u32", V(26), 131072, V(24))
    def pread(m, u):
        off = m*16384 + (u >> 2)*256
        return k.dsread("ds_read_b128", FR(m), V(24 + off // 65536), off % 65536)
    def vprep(u):
        fl = [lambda: k.wait_vm(v_tok[u])]
        regs = v_reg[u]
        if regs[0][0] == 'a':
            tmp = [244, 246, 248, 250, 252, 254, 10, 12]
            for j in range(8):
                for q in range(2):
                    fl.append(lambda j=j, q=q: k.valu("v_accvgpr_read_b32", V(tmp[j]+q), A(regs[j][1]+q)))
            raws = [V(tmp[j], 2) for j in range(8)]
        else:
            raws = regs
        fl += perm_fill(raws, lambda t: VFR(u % 2, t))
        return fl
    paddr(0)
    for m in range(9): fr_tok[m] = pread(m, 0)
    for f in vprep(0): f()
    for u in range(16):
        fill = []
        if u + 1 < 16:
            paddr(u+1)
            fill = vprep(u+1)
        for m in range(9):
            k.wait_lg(fr_tok[m])
            for t in range(4):
                k.mfma(ACCO(m, t), FR(m), VFR(u % 2, t), ACCO(m, t) if u else 0)
                if fill: fill.pop(0)()
            if u + 1 < 16: fr_tok[m] = pread(m, u+1)
        while fill: fill.pop(0)()

    k.stamp()
    k.valu("v_lshlrev_b32", V(28), 4, V(3))
    k.valu("v_add_u32", V(28), LDS_SUM, V(28))
    for m in range(9):
        for w in range(4):
            k.dsread("ds_read_b128", V(32 + (m*4+w)*4, 4), V(28), w*576 + m*64)
    k.valu("v_lshrrev_b32", V(29), 1, V(2))
    k.valu("v_lshlrev_b32", V(30), 2, V(3))
    k.valu("v_xor_b32", V(30), V(30), V(29))
    k.valu("v_lshlrev_b32", V(30), 4, V(30))
    k.valu("v_lshl_add_u32", V(30), V(29), 8, V(30))
    k.valu("v_and_b32", V(29), 1, V(2))
    k.valu("v_lshl_add_u32", V(30), V(29), 3, V(30))
    k.valu("v_lshl_add_u32", V(30), V(27), 11, V(30))
    k.valu("v_add_u32", V(10), LDS_OST, V(30))
    for r in range(1, 4):
        k.valu("v_xor_b32", V(10+r), r << 4, V(10))
    k.valu("v_xor_b32", V(30), V(2), V(3))
    k.valu("v_lshlrev_b32", V(30), 4, V(30))
    k.valu("v_lshl_add_u32", V(30), V(3), 8, V(30))
    k.valu("v_lshl_add_u32", V(30), V(27), 11, V(30))
    k.valu("v_add_u32", V(14), LDS_OST, V(30))
    k.valu("v_xor_b32", V(15), 64, V(14))
    k.valu("v_lshlrev_b32", V(16), 4, V(1))
    k.wait_lg_all()
    for m in range(9):
        b = 32 + m*16
        for r in range(4):
            k.valu("v_add_f32", V(b+r), V(b+r), V(b+4+r))
            k.valu("v_add_f32", V(b+8+r), V(b+8+r), V(b+12+r))
        for r in range(4):
            k.valu("v_add_f32", V(b+r), V(b+r), V(b+8+r))
        for r in range(4):
            k.valu("v_rcp_f32", V(b+r), V(b+r), trans=True)
    pend = None
    for m in range(9):
        b = 32 + m*16
        for r in range(4):
            T = 176 + ((m*4 + r) % 4) * 6
            for t in range(4):
                k.valu("v_accvgpr_read_b32", V(T+t), A((m*4+t)*4 + r))
            for t in range(4):
                k.valu("v_mul_f32", V(T+t), V(T+t), V(b+r))
            k.valu("v_cvt_pk_bf16_f32", V(T+4), V(T), V(T+1))
            k.valu("v_cvt_pk_bf16_f32", V(T+5), V(T+2), V(T+3))
            k.dswrite("ds_write_b64", V(10+r), V(T+4, 2))
        RB = 212 + (m % 2)*8
        t0 = k.dsread("ds_read_b128", V(RB, 4), V(14))
        t1 = k.dsread("ds_read_b128", V(RB+4, 4), V(15), 1024)
        if pend is not None:
            pm, pRB, pt1 = pend
            k.wait_lg(pt1)
            st = stemp()
            e(f"s_add_u32 s{st}, s32, {pm*131072}")
            k.vstore("buffer_store_dwordx4", V(pRB, 4), V(16), SO, f"s{st}")
            k.vstore("buffer_store_dwordx4", V(pRB+4, 4), V(16), SO, f"s{st}", offset=1024)
        pend = (m, RB, t1)
    pm, pRB, pt1 = pend
    k.wait_lg(pt1)
    st = stemp()
    e(f"s_add_u32 s{st}, s32, {pm*131072}")
    k.vstore("buffer_store_dwordx4", V(pRB, 4), V(16), SO, f"s{st}")
    k.vstore("buffer_store_dwordx4", V(pRB+4, 4), V(16), SO, f"s{st}", offset=1024)
    k.stamp()
    k.wait_vm_all()
    k.stamp()
    k.dump("s5", 0)
    k.label("L_attn_end")
    e("s_endpgm")
    return k

def gen_oproj():
    k = Asm()
    e = k.raw
    k.label("oproj_kernel")
    e("s_cmp_ge_u32 s2, 256")
    e("s_cbranch_scc1 L_op_end")
    e("s_and_b32 s3, s2, 7")
    e("s_lshl_b32 s3, s3, 5")
    e("s_lshr_b32 s4, s2, 3")
    e("s_add_u32 s3, s3, s4")
    e("s_cmp_ge_u32 s3, 252")
    e("s_cbranch_scc1 L_op_end")
    e("s_load_dwordx4 s[36:39], s[0:1], 32")
    e("s_load_dwordx2 s[40:41], s[0:1], 56")
    e("s_mul_i32 s4, s3, 9363")
    e("s_lshr_b32 s4, s4, 16")
    e("s_mul_i32 s5, s4, 7")
    e("s_sub_u32 s5, s3, s5")
    e("v_and_b32 v1, 63, v0")
    e("v_and_b32 v2, 15, v0")
    e("v_lshrrev_b32 v3, 4, v1")
    e("v_lshrrev_b32 v4, 6, v0")
    e("s_mov_b32 s34, 0x05040100")
    e("s_mov_b32 s35, 0x07060302")
    e("v_lshlrev_b32 v5, 4, v1")
    e("v_lshl_add_u32 v5, v4, 14, v5")
    e("v_mul_u32_u24 v6, 7168, v3")
    e("v_lshl_add_u32 v6, v2, 3, v6")
    e("s_mov_b32 s6, 458752")
    e("v_mul_lo_u32 v7, s6, v4")
    e("v_add_u32 v6, v6, v7")
    e("v_add_u32 v7, 3584, v6")
    e("s_lshl_b32 s6, s4, 19")
    for m in range(4):
        for q in range(4):
            e(f"s_add_u32 s{64+m*4+q}, s6, {m*131072 + q*4096}")
    e("s_lshl_b32 s7, s5, 7")
    e("s_waitcnt lgkmcnt(0)")
    e("s_mov_b32 s8, s40"); e("s_mov_b32 s9, s41"); e("s_mov_b32 s10, 18874368"); e("s_mov_b32 s11, 0x20000")
    e("s_mov_b32 s12, s36"); e("s_mov_b32 s13, s37"); e("s_mov_b32 s14, 3670016"); e("s_mov_b32 s15, 0x20000")
    e("s_mov_b32 s16, s38"); e("s_mov_b32 s17, s39"); e("s_mov_b32 s18, 2064384"); e("s_mov_b32 s19, 0x20000")
    SA, SB, SOUT = "s[8:11]", "s[12:15]", "s[16:19]"
    NS = 5
    AFR = lambda st, m: V(96 + st*32 + m*4, 4)
    BRAW = lambda st, j: V(96 + st*32 + 16 + j*2, 2)
    BFR = lambda st, t: V(16 + st*8*0 + t*4, 4) if False else V(16 + (st % 1)*16 + t*4, 4)
    ACC = lambda m, t: V(32 + (m*4+t)*4, 4)
    tokA = {}; tokB = {}
    sidx = [0]
    def stemp():
        sidx[0] = (sidx[0] + 1) % 4
        return 52 + sidx[0]
    def issue(s):
        st = s % NS
        sb = stemp()
        e(f"s_add_u32 s{sb}, s7, {32*s*896}")
        for j in range(8):
            if j < 4: tokB[s] = k.vload("buffer_load_dwordx2", BRAW(st, j), V(6), SB, f"s{sb}", offset=j*896)
            else: tokB[s] = k.vload("buffer_load_dwordx2", BRAW(st, j), V(7), SB, f"s{sb}", offset=(j-4)*896)
        for m in range(4):
            tokA[s] = k.vload("buffer_load_dwordx4", AFR(st, m), V(5), SA, f"s{64+m*4+(s>>2)}", offset=(s&3)*1024)
    for s in range(NS): issue(s)
    for s in range(16):
        st = s % NS
        k.wait_vm(tokB[s])
        for t in range(4):
            for i in range(4):
                hi = BRAW(st, 2*i+1); lo = BRAW(st, 2*i)
                k.valu("v_perm_b32", V(16 + t*4 + i), V(hi[1] + (t >> 1)), V(lo[1] + (t >> 1)), "s35" if (t & 1) else "s34")
        k.wait_vm(tokA[s])
        for m in range(4):
            for t in range(4):
                k.mfma(ACC(m, t), AFR(st, m), V(16 + t*4, 4), ACC(m, t) if s else 0)
        if s + NS < 16: issue(s + NS)
    k.valu("v_lshlrev_b32", V(8), 4, V(1))
    k.valu("v_lshl_add_u32", V(8), V(4), 14, V(8))
    for m in range(4):
        for t in range(4):
            k.dswrite("ds_write_b128", V(8), ACC(m, t), (m*4+t)*1024)
    k.wait_lg_all()
    k.barrier()
    k.valu("v_lshrrev_b32", V(9), 1, V(4))
    k.valu("v_and_b32", V(10), 1, V(4))
    k.valu("v_lshlrev_b32", V(8), 4, V(1))
    k.valu("v_lshl_add_u32", V(8), V(9), 12, V(8))
    k.valu("v_lshl_add_u32", V(8), V(10), 3, V(8))
    k.valu("v_add_u32", V(11), 65536, V(8))
    for t in range(4):
        for w in range(8):
            off = w*16384 + t*1024
            k.dsread("ds_read_b64", V(96 + (t*8 + w)*2, 2), V(8) if off < 65536 else V(11), off % 65536)
    k.wait_lg_all()
    for t in range(4):
        b = 96 + t*16
        for q in range(2):
            k.valu("v_add_f32", V(b+q), V(b+q), V(b+2+q))
            k.valu("v_add_f32", V(b+4+q), V(b+4+q), V(b+6+q))
            k.valu("v_add_f32", V(b+8+q), V(b+8+q), V(b+10+q))
            k.valu("v_add_f32", V(b+12+q), V(b+12+q), V(b+14+q))
        for q in range(2):
            k.valu("v_add_f32", V(b+q), V(b+q), V(b+4+q))
            k.valu("v_add_f32", V(b+8+q), V(b+8+q), V(b+12+q))
        for q in range(2):
            k.valu("v_add_f32", V(b+q), V(b+q), V(b+8+q))
    k.valu("v_lshlrev_b32", V(12), 4, V(9))
    k.valu("v_lshl_add_u32", V(12), V(3), 2, V(12))
    k.valu("v_lshl_add_u32", V(12), V(10), 1, V(12))
    k.valu("v_mul_u32_u24", V(12), 896, V(12))
    k.valu("v_lshl_add_u32", V(12), V(2), 3, V(12))
    e("s_mul_i32 s6, s4, 57344")
    e("s_add_u32 s6, s6, s7")
    for q in range(2):
        k.valu("v_cvt_pk_bf16_f32", V(16+q*2), V(96+q), V(112+q))
        k.valu("v_cvt_pk_bf16_f32", V(17+q*2), V(128+q), V(144+q))
        k.vstore("buffer_store_dwordx2", V(16+q*2, 2), V(12), SOUT, "s6", offset=q*896)
    k.label("L_op_end")
    e("s_endpgm")
    return k

HEADER = """; Kernarg layout for this problem (64 bytes, ptrs only, base s[0:1]):
;   offset   0: d_in[0] x  shape=(16, 144, 448) dtype=bfloat16 strides=(129024, 896, 2) contiguous=True
;   offset   8: d_in[1] k_cache  shape=(16, 16, 512, 256) dtype=bfloat16 strides=(4194304, 262144, 512, 2) contiguous=True
;   offset  16: d_in[2] v_cache  shape=(16, 16, 512, 256) dtype=bfloat16 strides=(4194304, 262144, 512, 2) contiguous=True
;   offset  24: d_in[3] wq  shape=(448, 4096) dtype=bfloat16 strides=(8192, 2) contiguous=True
;   offset  32: d_in[4] wo  shape=(4096, 448) dtype=bfloat16 strides=(896, 2) contiguous=True
;   offset  40: d_out     shape=(16, 144, 448) dtype=bfloat16 (2 bytes/elem)
;   offset  48: d_debug   256 bytes
;   offset  56: d_ws      268435456 bytes workspace
; Generated by a Python generator script (hand-designed schedule).
; Launch 1: fused Q-projection + attention per (batch, head); writes O (bf16) to d_ws.
; Launch 2: output projection O @ Wo.
; @launch kernel=standalone__mha_block_cached__near_ridge_kernel grid=(256,1,1) block=(256,1,1) lds=%d
; @launch kernel=oproj_kernel grid=(256,1,1) block=(512,1,1) lds=131072
.amdgcn_target "amdgcn-amd-amdhsa--gfx950"
.text
""" % LDS1

def main():
    a = gen_attn(); o = gen_oproj()
    s = HEADER
    s += ".globl standalone__mha_block_cached__near_ridge_kernel\n.p2align 8\n.type standalone__mha_block_cached__near_ridge_kernel,@function\n"
    s += a.text()
    s += ".globl oproj_kernel\n.p2align 8\n.type oproj_kernel,@function\n"
    s += o.text()
    s += """.section .rodata,"a"
.p2align 6
.amdhsa_kernel standalone__mha_block_cached__near_ridge_kernel
  .amdhsa_next_free_vgpr 512
  .amdhsa_next_free_sgpr 96
  .amdhsa_accum_offset 256
  .amdhsa_group_segment_fixed_size 0
  .amdhsa_kernarg_size 64
  .amdhsa_user_sgpr_count 2
  .amdhsa_user_sgpr_kernarg_segment_ptr 1
  .amdhsa_system_sgpr_workgroup_id_x 1
.end_amdhsa_kernel
.p2align 6
.amdhsa_kernel oproj_kernel
  .amdhsa_next_free_vgpr 256
  .amdhsa_next_free_sgpr 96
  .amdhsa_accum_offset 256
  .amdhsa_group_segment_fixed_size 0
  .amdhsa_kernarg_size 64
  .amdhsa_user_sgpr_count 2
  .amdhsa_user_sgpr_kernarg_segment_ptr 1
  .amdhsa_system_sgpr_workgroup_id_x 1
.end_amdhsa_kernel
"""
    out = sys.argv[1] if len(sys.argv) > 1 else "standalone__mha_block_cached__near_ridge.s"
    open(out, "w").write(s)
    print("attn counts", a.count, "nops", a.nops)
    print("oproj counts", o.count, "nops", o.nops)

main()
```

```python
import sys, math
sys.path.insert(0, 'gen')
from asmlib import *

C1 = math.log2(math.e) / 16.0
import os
DBG = int(os.environ.get('DBG','0'))
DBGWG = int(os.environ.get('DBGWG','37'))
KRATE = int(os.environ.get('KRATE','3'))
KFLAGS = os.environ.get('KFLAGS',' nt')
OSTF = os.environ.get('OSTF','')
OLDF = os.environ.get('OLDF','')
WOF = os.environ.get('WOF','')
WQF = os.environ.get('WQF','')
XF = os.environ.get('XF','')
LDS_MX = 147456
LDS_SUM = LDS_MX + 2304
LDS_OST = LDS_SUM + 2304
LDS1 = LDS_OST + 8192

def add_stamp(k, sb=64):
    k.nst = 0
    def stamp():
        if not DBG: return
        k.raw("s_memtime s[62:63]")
        k.raw("s_waitcnt lgkmcnt(0)")
        k.raw(f"s_mov_b32 s{sb+k.nst}, s62")
        k.nst += 1
    k.stamp = stamp
    def dump(waveS, base):
        if not DBG: return
        k.raw(f"s_cmp_lg_u32 s2, {DBGWG}")
        k.raw(f"s_cbranch_scc1 L_nodump{base}")
        k.raw("s_load_dwordx2 s[60:61], s[0:1], 48")
        k.raw("s_waitcnt lgkmcnt(0)")
        k.raw("s_mov_b32 s62, 256")
        k.raw("s_mov_b32 s63, 0x20000")
        k.raw(f"v_mov_b32 v1, 0")
        k.raw(f"s_cmp_lg_u32 {waveS}, 0")
        k.raw(f"s_cbranch_scc1 L_nodump{base}")
        for i in range(k.nst):
            k.raw(f"s_sub_u32 s58, s{sb+i}, s{sb}")
            k.raw(f"v_mov_b32 v2, s58")
            k.raw(f"buffer_store_dword v2, v1, s[60:63], 0 offen offset:{(base+i)*4}")
        k.raw("s_waitcnt vmcnt(0)")
        k.label(f"L_nodump{base}")
    k.dump = dump

def gen_attn():
    k = Asm()
    add_stamp(k)
    e = k.raw
    k.label("standalone__mha_block_cached__near_ridge_kernel")
    e("s_cmp_ge_u32 s2, 256")
    e("s_cbranch_scc1 L_attn_end")
    k.stamp()
    e("s_load_dwordx8 s[36:43], s[0:1], 0")
    e("s_load_dwordx2 s[44:45], s[0:1], 56")
    e("v_and_b32 v1, 63, v0")
    e("v_and_b32 v2, 15, v0")
    e("v_lshrrev_b32 v3, 4, v1")
    e("v_lshrrev_b32 v27, 6, v0")
    e("s_lshr_b32 s3, s2, 4")
    e("s_and_b32 s4, s2, 15")
    e("v_readfirstlane_b32 s5, v27")
    e("s_mov_b32 s33, " + f32hex(C1))
    e("s_mov_b32 s34, 0x05040100")
    e("s_mov_b32 s35, 0x07060302")
    e("v_lshrrev_b32 v28, 1, v3")
    e("v_xor_b32 v29, v3, v28")
    e("v_and_b32 v29, 1, v29")
    e("v_lshl_or_b32 v29, v29, 1, v28")
    e("v_and_b32 v30, 3, v1")
    e("v_xor_b32 v29, v29, v30")
    e("v_lshrrev_b32 v30, 2, v1")
    e("v_mul_u32_u24 v4, 896, v30")
    e("v_lshl_add_u32 v4, v29, 4, v4")
    e("v_lshl_add_u32 v4, v27, 6, v4")
    e("v_lshrrev_b32 v30, 2, v2")
    e("v_lshrrev_b32 v28, 1, v30")
    e("v_xor_b32 v29, v30, v28")
    e("v_and_b32 v29, 1, v29")
    e("v_lshl_or_b32 v29, v29, 1, v28")
    e("v_xor_b32 v29, v29, v3")
    e("v_lshlrev_b32 v5, 6, v2")
    e("v_lshl_add_u32 v5, v29, 4, v5")
    e("v_add_u32 v6, 0x10000, v5")
    e("v_lshlrev_b32 v7, 3, v2")
    e("v_lshl_add_u32 v7, v3, 16, v7")
    e("v_and_b32 v28, 3, v1")
    e("v_lshlrev_b32 v8, 4, v28")
    e("v_lshrrev_b32 v28, 2, v1")
    e("v_lshl_add_u32 v8, v28, 9, v8")
    e("v_lshlrev_b32 v0, 4, v2")
    e("v_lshl_add_u32 v0, v3, 2, v0")
    e("v_lshlrev_b32 v9, 3, v2")
    e("v_lshl_add_u32 v9, v3, 12, v9")
    e("v_xor_b32 v28, v3, v2")
    e("v_lshlrev_b32 v28, 4, v28")
    e("v_lshl_add_u32 v18, v2, 9, v28")
    e("v_lshl_add_u32 v23, v2, 10, v28")
    e("v_lshrrev_b32 v28, 1, v3")
    e("v_xor_b32 v28, v28, v2")
    e("v_lshlrev_b32 v28, 4, v28")
    e("v_lshl_add_u32 v21, v2, 10, v28")
    e("v_lshl_add_u32 v21, v27, 8, v21")
    e("v_and_b32 v28, 1, v3")
    e("v_lshl_add_u32 v21, v28, 3, v21")
    e("s_lshl_b32 s28, s5, 10")
    e("s_lshl_b32 s29, s4, 9")
    e("s_lshl_b32 s6, s5, 7")
    e("s_add_u32 s29, s29, s6")
    e("s_lshl_b32 s30, s5, 16")
    e("s_mov_b32 s31, s6")
    e("s_mul_i32 s32, s3, 1179648")
    e("s_lshl_b32 s6, s4, 13")
    e("s_add_u32 s32, s32, s6")
    e("s_lshl_b32 s6, s5, 11")
    e("s_add_u32 s32, s32, s6")
    for t in range(8):
        e(f"s_add_u32 s{48+t}, s30, {t*8192}")
    e("s_waitcnt lgkmcnt(0)")
    e("s_mul_i32 s6, s3, 129024")
    e("s_add_u32 s8, s36, s6")
    e("s_addc_u32 s9, s37, 0")
    e("s_mov_b32 s10, 129024")
    e("s_mov_b32 s11, 0x20000")
    e("s_mov_b32 s12, s42")
    e("s_mov_b32 s13, s43")
    e("s_mov_b32 s14, 3670016")
    e("s_mov_b32 s15, 0x20000")
    e("s_lshl_b32 s6, s2, 18")
    e("s_add_u32 s16, s38, s6")
    e("s_addc_u32 s17, s39, 0")
    e("s_mov_b32 s18, 262144")
    e("s_mov_b32 s19, 0x20000")
    e("s_add_u32 s20, s40, s6")
    e("s_addc_u32 s21, s41, 0")
    e("s_mov_b32 s22, 262144")
    e("s_mov_b32 s23, 0x20000")
    e("s_mov_b32 s24, s44")
    e("s_mov_b32 s25, s45")
    e("s_mov_b32 s26, 18874368")
    e("s_mov_b32 s27, 0x20000")
    SX, SWQ, SK, SV, SO = "s[8:11]", "s[12:15]", "s[16:19]", "s[20:23]", "s[24:27]"

    def dma(sp, m):
        e(f"s_add_u32 m0, s28, {m*14336 + sp*4096}")
        e(f"s_mov_b32 s46, {m*14336 + sp*256}")
        return k.vdma(V(4), SX, "s46", flags=XF)
    e("s_cmp_ge_u32 s5, 2")
    e("s_cbranch_scc1 L_skipdma")
    for m in range(9):
        dma(3, m)
    k.label("L_skipdma")

    WRAW = lambda st, j: V(32 + st*16 + j*2, 2)
    WFR = lambda st, t: V(96 + st*16 + t*4, 4)
    FR = lambda m: V(176 + m*4, 4)
    ACCQ = lambda m, t: A((m*4+t)*4, 4)
    VB_A = [V(128 + 4*i, 4) for i in range(12)]
    VB_B = [V(212 + 4*i, 4) for i in range(8)]
    AR = [A(144 + 4*i, 4) for i in range(28)]
    init_slots = VB_A + VB_B + AR
    stmp = [46, 47, 58, 59]
    sidx = [0]
    def stemp():
        sidx[0] = (sidx[0] + 1) % len(stmp)
        return stmp[sidx[0]]

    wq_tok = {}
    def issue_wq(s):
        for j in range(8):
            st = stemp()
            e(f"s_add_u32 s{st}, s29, {(32*s+j)*8192}")
            wq_tok[s] = k.vload("buffer_load_dwordx2", WRAW(s % 4, j), V(7), SWQ, f"s{st}", flags=WQF)
    k_tok = {}
    k_slot = {}
    k_next = [0]
    korder = [(2*sp + ee, t) for sp in range(4) for t in range(4, 8) for ee in range(2)] + \
             [(2*sp + ee, t) for sp in range(4) for t in range(0, 4) for ee in range(2)]
    def issue_k(slot):
        s_, t = korder[k_next[0]]; k_next[0] += 1
        i = s_*8 + t
        k_slot[i] = slot
        k_tok[i] = k.vload("buffer_load_dwordx4", slot, V(8), SK, f"s{48+t}", offset=s_*64, flags=KFLAGS)
    kp_tok = {}
    def kperm(i):
        k.wait_vm(k_tok[i])
        kd, b, _ = k_slot[i]
        for q in range(4):
            k._mem_haz([], [])
            k.lines.append(f"    ds_bpermute_b32 {kd}{b+q}, v0, {kd}{b+q}")
            k.slot += 1; k.lg_issued += 1
        kp_tok[i] = k.lg_issued
    v_tok = {}
    v_reg = {}
    def issue_v(u, regs):
        st = stemp()
        e(f"s_add_u32 s{st}, s31, {u*16384}")
        v_reg[u] = regs
        for j in range(8):
            v_tok[u] = k.vload("buffer_load_dwordx2", regs[j], V(9), SV, f"s{st}", offset=j*512, flags=KFLAGS)

    def perm_fill(raws, out):
        fl = []
        for t in range(4):
            for i in range(4):
                hi = raws[2*i+1]; lo = raws[2*i]
                def f(t=t, i=i, hi=hi, lo=lo):
                    o = out(t)
                    k.valu("v_perm_b32", V(o[1]+i), V(hi[1] + (t >> 1)), V(lo[1] + (t >> 1)), "s35" if (t & 1) else "s34")
                fl.append(f)
        return fl

    xtok = {}
    for m in range(9): xtok[0] = dma(0, m)
    issue_wq(0); issue_wq(1)
    for sp in (1, 2):
        for m in range(9): xtok[sp] = dma(sp, m)
    ring_next = 0
    for _ in range(8):
        issue_k(init_slots[ring_next]); ring_next += 1
    k.wait_vm(xtok[0])
    k.barrier()
    k.stamp()
    issue_wq(2)

    def xread(m, s):
        off = (m*14 + s) * 1024
        if off < 65536: return k.dsread("ds_read_b128", FR(m), V(5), off)
        return k.dsread("ds_read_b128", FR(m), V(6), off - 65536)
    fr_tok = {}
    for m in range(9): fr_tok[m] = xread(m, 0)
    k.wait_vm(wq_tok[0])
    for f in perm_fill([WRAW(0, j) for j in range(8)], lambda t: WFR(0, t)): f()
    for s in range(14):
        if s in (3, 7):
            k.wait_vm(xtok[(s+1)//4])
            k.barrier()
        fill = []
        if s + 3 < 14:
            fill.append(lambda s=s: issue_wq(s+3))
        def kfill():
            nonlocal ring_next
            for _ in range(KRATE):
                if ring_next < len(init_slots):
                    issue_k(init_slots[ring_next]); ring_next += 1
        fill.append(kfill)
        if s + 1 < 14:
            fill.append(lambda s=s: k.wait_vm(wq_tok[s+1]))
            fill += perm_fill([WRAW((s+1) % 4, j) for j in range(8)], lambda t, s=s: WFR((s+1) % 2, t))
        for m in range(9):
            k.wait_lg(fr_tok[m])
            for t in range(4):
                k.mfma(ACCQ(m, t), FR(m), WFR(s % 2, t), ACCQ(m, t) if s else 0)
                if m >= 1 and fill:
                    fill.pop(0)()
            if s + 1 < 14: fr_tok[m] = xread(m, s+1)
        while fill: fill.pop(0)()
    while ring_next < len(init_slots):
        issue_k(init_slots[ring_next]); ring_next += 1
    k.stamp()
    k.barrier()
    k.valu("v_and_b32", V(28), 1, V(27))
    k.valu("v_lshlrev_b32", V(28), 3, V(28))
    k.valu("v_lshrrev_b32", V(29), 1, V(2))
    k.valu("v_add_u32", V(28), V(28), V(29))
    k.valu("v_lshrrev_b32", V(29), 1, V(27))
    k.valu("v_lshlrev_b32", V(29), 8, V(29))
    k.valu("v_and_b32", V(30), 1, V(2))
    k.valu("v_lshl_add_u32", V(29), V(30), 3, V(29))
    for r in range(4):
        k.valu("v_lshl_add_u32", V(30), V(3), 2, r)
        k.valu("v_xor_b32", V(31), V(28), V(30))
        k.valu("v_lshl_add_u32", V(10+r), V(31), 4, V(29))
        k.valu("v_lshl_add_u32", V(10+r), V(30), 9, V(10+r))
        k.valu("v_add_u32", V(14+r), 32768, V(10+r))
    tb = 244
    for m in range(9):
        for r in range(4):
            T = tb + ((m*4 + r) % 2) * 6
            for t in range(4):
                k.valu("v_accvgpr_read_b32", V(T+t), A((m*4+t)*4 + r))
            k.valu("v_cvt_pk_bf16_f32", V(T+4), V(T), V(T+1))
            k.valu("v_cvt_pk_bf16_f32", V(T+5), V(T+2), V(T+3))
            if m < 4: k.dswrite("ds_write_b64", V(10+r), V(T+4, 2), m*8192)
            else: k.dswrite("ds_write_b64", V(14+r), V(T+4, 2), (m-4)*8192)
    k.wait_lg_all()
    k.barrier()
    k.stamp()

    def ACCS(t, m):
        if t < 4: return V(32 + (m*4 + t)*4, 4)
        return A((m*4 + (t-4))*4, 4)
    def qaddr(s):
        k.valu("v_xor_b32", V(19), (s & 3) << 6, V(18))
        k.valu("v_add_u32", V(20), 65536, V(19))
    def qread(m, s):
        off = m*8192 + (s >> 2)*256
        if off < 65536: return k.dsread("ds_read_b128", FR(m), V(19), off)
        return k.dsread("ds_read_b128", FR(m), V(20), off - 65536)
    seq = [(p, s_) for p in (0, 1) for s_ in range(8)]
    tiles = lambda p: range(4, 8) if p == 0 else range(0, 4)
    qaddr(0)
    for t in tiles(0): kperm(t)
    for m in range(9): fr_tok[m] = qread(m, 0)
    v_next = 0
    vfree = []
    for idx, (p, s) in enumerate(seq):
        nxt = seq[idx+1] if idx + 1 < len(seq) else None
        if nxt: qaddr(nxt[1])
        for m in range(9):
            k.wait_lg(fr_tok[m])
            for t in tiles(p):
                i = s*8 + t
                k.wait_lg(kp_tok[i])
                k.mfma(ACCS(t, m), k_slot[i], FR(m), ACCS(t, m) if s else 0)
            if nxt:
                fr_tok[m] = qread(m, nxt[1])
                if 1 <= m < 5: kperm(nxt[1]*8 + list(tiles(nxt[0]))[m-1])
        for t in tiles(p):
            sl = k_slot[s*8 + t]
            if sl in VB_A: continue
            if k_next[0] < 64: issue_k(sl)
            elif sl in AR: vfree.append(sl)
        while len(vfree) >= 4 and v_next < 7:
            sls = vfree[:4]; vfree = vfree[4:]
            regs = []
            for sl in sls:
                regs += [A(sl[1], 2), A(sl[1] + 2, 2)]
            issue_v(v_next, regs); v_next += 1
    assert v_next == 7, v_next

    k.stamp()
    NEGM = lambda m: V(212 + m)
    PSUM = lambda m: V(221 + m)
    k.valu("v_lshlrev_b32", V(28), 4, V(2))
    k.valu("v_lshl_add_u32", V(28), V(27), 2, V(28))
    k.valu("v_add_u32", V(28), LDS_MX, V(28))
    k.valu("v_lshlrev_b32", V(29), 4, V(2))
    k.valu("v_add_u32", V(29), LDS_MX, V(29))
    for m in range(9):
        mx = NEGM(m)
        vals = []
        for t in range(4):
            b = ACCS(t, m)[1]
            vals += [V(b+r) for r in range(4)]
        k.valu("v_max3_f32", mx, vals[0], vals[1], vals[2])
        k.valu("v_max3_f32", mx, vals[3], vals[4], mx)
        for i in range(5, 15, 2):
            k.valu("v_max3_f32", mx, vals[i], vals[i+1], mx)
        k.valu("v_max_f32", mx, vals[15], mx)
        for t in range(4, 8):
            b = ACCS(t, m)[1]
            T = 176 + (t-4)*4
            for r in range(4):
                k.valu("v_accvgpr_read_b32", V(T+r), A(b+r))
        for t in range(4, 8):
            T = 176 + (t-4)*4
            k.valu("v_max3_f32", mx, V(T), V(T+1), mx)
            k.valu("v_max3_f32", mx, V(T+2), V(T+3), mx)
        k.valu("v_mov_b32", V(230), mx)
        k.valu("v_permlane32_swap_b32", V(230), mx, permlane=True, extra_w=(mx,))
        k.valu("v_max_f32", mx, V(230), mx)
        k.valu("v_mov_b32", V(230), mx)
        k.valu("v_permlane16_swap_b32", V(230), mx, permlane=True, extra_w=(mx,))
        k.valu("v_max_f32", mx, V(230), mx)
        k.dswrite("ds_write_b32", V(28), mx, m*256)
    k.wait_lg_all()
    k.barrier()
    k.stamp()
    toks = []
    for m in range(9):
        toks.append(k.dsread("ds_read_b128", V(176 + m*4, 4), V(29), m*256))
    k.valu("v_mov_b32", V(231), "s33")
    for m in range(9):
        k.wait_lg(toks[m])
        T = 176 + m*4
        k.valu("v_max3_f32", NEGM(m), V(T), V(T+1), V(T+2))
        k.valu("v_max_f32", NEGM(m), V(T+3), NEGM(m))
        k.valu("v_mul_f32", NEGM(m), V(231), NEGM(m))
        k.valu("v_sub_f32", NEGM(m), 0, NEGM(m))
    tsel = 0
    for m in range(9):
        if m == 0: k.valu("v_mov_b32", V(22), V(21))
        else: k.valu("v_add_u32", V(22), m*16384, V(21))
        first = True
        for t in range(8):
            if t < 4:
                b = ACCS(t, m)[1]
                S = [V(b+r) for r in range(4)]
            else:
                T = 176 + (tsel % 4)*4; tsel += 1
                ab = ACCS(t, m)[1]
                for r in range(4):
                    k.valu("v_accvgpr_read_b32", V(T+r), A(ab+r))
                S = [V(T+r) for r in range(4)]
            for r in range(4):
                k.valu("v_fma_f32", S[r], S[r], "s33", NEGM(m))
            for r in range(4):
                k.valu("v_exp_f32", S[r], S[r], trans=True)
            P = 232 + (t % 4)*2
            AD = 240 + (t % 4)
            k.valu("v_xor_b32", V(AD), t << 5, V(22))
            k.valu("v_cvt_pk_bf16_f32", V(P), S[0], S[1])
            k.valu("v_cvt_pk_bf16_f32", V(P+1), S[2], S[3])
            if first:
                k.valu("v_add_f32", PSUM(m), S[0], S[1]); first = False
            else:
                k.valu("v_add_f32", PSUM(m), S[0], PSUM(m))
                k.valu("v_add_f32", PSUM(m), S[1], PSUM(m))
            k.valu("v_add_f32", PSUM(m), S[2], PSUM(m))
            k.valu("v_add_f32", PSUM(m), S[3], PSUM(m))
            k.dswrite("ds_write_b64", V(AD), V(P, 2))
        issue_v(7 + m, [V(32 + m*16 + 2*j, 2) for j in range(8)])
    k.valu("v_mul_u32_u24", V(28), 576, V(27))
    k.valu("v_lshl_add_u32", V(28), V(2), 2, V(28))
    k.valu("v_add_u32", V(28), LDS_SUM, V(28))
    for m in range(9):
        ps = PSUM(m)
        k.valu("v_mov_b32", V(230), ps)
        k.valu("v_permlane32_swap_b32", V(230), ps, permlane=True, extra_w=(ps,))
        k.valu("v_add_f32", ps, V(230), ps)
        k.valu("v_mov_b32", V(230), ps)
        k.valu("v_permlane16_swap_b32", V(230), ps, permlane=True, extra_w=(ps,))
        k.valu("v_add_f32", ps, V(230), ps)
        k.dswrite("ds_write_b32", V(28), ps, m*64)
    k.wait_lg_all()
    k.barrier()
    k.stamp()

    ACCO = lambda m, t: A((m*4+t)*4, 4)
    VFR = lambda st, t: V(212 + st*16 + t*4, 4)
    def paddr(u):
        k.valu("v_xor_b32", V(24), (u & 3) << 6, V(23))
        k.valu("v_add_u32", V(25), 65536, V(24))
        k.valu("v_add_u32", V(26), 131072, V(24))
    def pread(m, u):
        off = m*16384 + (u >> 2)*256
        return k.dsread("ds_read_b128", FR(m), V(24 + off // 65536), off % 65536)
    def vprep(u):
        fl = [lambda: k.wait_vm(v_tok[u])]
        regs = v_reg[u]
        if regs[0][0] == 'a':
            tmp = [244, 246, 248, 250, 252, 254, 10, 12]
            for j in range(8):
                for q in range(2):
                    fl.append(lambda j=j, q=q: k.valu("v_accvgpr_read_b32", V(tmp[j]+q), A(regs[j][1]+q)))
            raws = [V(tmp[j], 2) for j in range(8)]
        else:
            raws = regs
        fl += perm_fill(raws, lambda t: VFR(u % 2, t))
        return fl
    paddr(0)
    for m in range(9): fr_tok[m] = pread(m, 0)
    for f in vprep(0): f()
    for u in range(16):
        fill = []
        if u + 1 < 16:
            paddr(u+1)
            fill = vprep(u+1)
        for m in range(9):
            k.wait_lg(fr_tok[m])
            for t in range(4):
                k.mfma(ACCO(m, t), FR(m), VFR(u % 2, t), ACCO(m, t) if u else 0)
                if fill: fill.pop(0)()
            if u + 1 < 16: fr_tok[m] = pread(m, u+1)
        while fill: fill.pop(0)()

    k.stamp()
    k.valu("v_lshlrev_b32", V(28), 4, V(3))
    k.valu("v_add_u32", V(28), LDS_SUM, V(28))
    for m in range(9):
        for w in range(4):
            k.dsread("ds_read_b128", V(32 + (m*4+w)*4, 4), V(28), w*576 + m*64)
    k.valu("v_lshrrev_b32", V(29), 1, V(2))
    k.valu("v_lshlrev_b32", V(30), 2, V(3))
    k.valu("v_xor_b32", V(30), V(30), V(29))
    k.valu("v_lshlrev_b32", V(30), 4, V(30))
    k.valu("v_lshl_add_u32", V(30), V(29), 8, V(30))
    k.valu("v_and_b32", V(29), 1, V(2))
    k.valu("v_lshl_add_u32", V(30), V(29), 3, V(30))
    k.valu("v_lshl_add_u32", V(30), V(27), 11, V(30))
    k.valu("v_add_u32", V(10), LDS_OST, V(30))
    for r in range(1, 4):
        k.valu("v_xor_b32", V(10+r), r << 4, V(10))
    k.valu("v_xor_b32", V(30), V(2), V(3))
    k.valu("v_lshlrev_b32", V(30), 4, V(30))
    k.valu("v_lshl_add_u32", V(30), V(3), 8, V(30))
    k.valu("v_lshl_add_u32", V(30), V(27), 11, V(30))
    k.valu("v_add_u32", V(14), LDS_OST, V(30))
    k.valu("v_xor_b32", V(15), 64, V(14))
    k.valu("v_lshlrev_b32", V(16), 4, V(1))
    k.wait_lg_all()
    for m in range(9):
        b = 32 + m*16
        for r in range(4):
            k.valu("v_add_f32", V(b+r), V(b+r), V(b+4+r))
            k.valu("v_add_f32", V(b+8+r), V(b+8+r), V(b+12+r))
        for r in range(4):
            k.valu("v_add_f32", V(b+r), V(b+r), V(b+8+r))
        for r in range(4):
            k.valu("v_rcp_f32", V(b+r), V(b+r), trans=True)
    pend = None
    for m in range(9):
        b = 32 + m*16
        for r in range(4):
            T = 176 + ((m*4 + r) % 4) * 6
            for t in range(4):
                k.valu("v_accvgpr_read_b32", V(T+t), A((m*4+t)*4 + r))
            for t in range(4):
                k.valu("v_mul_f32", V(T+t), V(T+t), V(b+r))
            k.valu("v_cvt_pk_bf16_f32", V(T+4), V(T), V(T+1))
            k.valu("v_cvt_pk_bf16_f32", V(T+5), V(T+2), V(T+3))
            k.dswrite("ds_write_b64", V(10+r), V(T+4, 2))
        RB = 212 + (m % 2)*8
        t0 = k.dsread("ds_read_b128", V(RB, 4), V(14))
        t1 = k.dsread("ds_read_b128", V(RB+4, 4), V(15), 1024)
        if pend is not None:
            pm, pRB, pt1 = pend
            k.wait_lg(pt1)
            st = stemp()
            e(f"s_add_u32 s{st}, s32, {pm*131072}")
            k.vstore("buffer_store_dwordx4", V(pRB, 4), V(16), SO, f"s{st}", flags=OSTF)
            k.vstore("buffer_store_dwordx4", V(pRB+4, 4), V(16), SO, f"s{st}", offset=1024, flags=OSTF)
        pend = (m, RB, t1)
    pm, pRB, pt1 = pend
    k.wait_lg(pt1)
    st = stemp()
    e(f"s_add_u32 s{st}, s32, {pm*131072}")
    k.vstore("buffer_store_dwordx4", V(pRB, 4), V(16), SO, f"s{st}", flags=OSTF)
    k.vstore("buffer_store_dwordx4", V(pRB+4, 4), V(16), SO, f"s{st}", offset=1024, flags=OSTF)
    k.stamp()
    k.wait_vm_all()
    k.stamp()
    k.dump("s5", 0)
    k.label("L_attn_end")
    e("s_endpgm")
    return k

def gen_oproj():
    k = Asm()
    add_stamp(k, 84)
    e = k.raw
    k.label("oproj_kernel")
    e("s_cmp_ge_u32 s2, 256")
    e("s_cbranch_scc1 L_op_end")
    e("s_and_b32 s3, s2, 7")
    e("s_lshl_b32 s3, s3, 5")
    e("s_lshr_b32 s4, s2, 3")
    e("s_add_u32 s3, s3, s4")
    e("s_cmp_ge_u32 s3, 252")
    e("s_cbranch_scc1 L_op_end")
    k.stamp()
    e("s_load_dwordx4 s[36:39], s[0:1], 32")
    e("s_load_dwordx2 s[40:41], s[0:1], 56")
    e("s_mul_i32 s4, s3, 9363")
    e("s_lshr_b32 s4, s4, 16")
    e("s_mul_i32 s5, s4, 7")
    e("s_sub_u32 s5, s3, s5")
    e("v_and_b32 v1, 63, v0")
    e("v_and_b32 v2, 15, v0")
    e("v_lshrrev_b32 v3, 4, v1")
    e("v_lshrrev_b32 v4, 6, v0")
    e("s_mov_b32 s34, 0x05040100")
    e("s_mov_b32 s35, 0x07060302")
    e("v_lshlrev_b32 v5, 4, v1")
    e("v_lshl_add_u32 v5, v4, 14, v5")
    e("v_mul_u32_u24 v6, 7168, v3")
    e("v_lshl_add_u32 v6, v2, 3, v6")
    e("s_mov_b32 s6, 458752")
    e("v_mul_lo_u32 v7, s6, v4")
    e("v_add_u32 v6, v6, v7")
    e("v_add_u32 v7, 3584, v6")
    e("s_lshl_b32 s6, s4, 19")
    for m in range(4):
        for q in range(4):
            e(f"s_add_u32 s{64+m*4+q}, s6, {m*131072 + q*4096}")
    e("s_lshl_b32 s7, s5, 7")
    e("s_waitcnt lgkmcnt(0)")
    e("s_mov_b32 s8, s40"); e("s_mov_b32 s9, s41"); e("s_mov_b32 s10, 18874368"); e("s_mov_b32 s11, 0x20000")
    e("s_mov_b32 s12, s36"); e("s_mov_b32 s13, s37"); e("s_mov_b32 s14, 3670016"); e("s_mov_b32 s15, 0x20000")
    e("s_mov_b32 s16, s38"); e("s_mov_b32 s17, s39"); e("s_mov_b32 s18, 2064384"); e("s_mov_b32 s19, 0x20000")
    SA, SB, SOUT = "s[8:11]", "s[12:15]", "s[16:19]"
    NS = 5
    AFR = lambda st, m: V(96 + st*32 + m*4, 4)
    BRAW = lambda st, j: V(96 + st*32 + 16 + j*2, 2)
    BFR = lambda st, t: V(16 + st*8*0 + t*4, 4) if False else V(16 + (st % 1)*16 + t*4, 4)
    ACC = lambda m, t: V(32 + (m*4+t)*4, 4)
    tokA = {}; tokB = {}
    sidx = [0]
    def stemp():
        sidx[0] = (sidx[0] + 1) % 4
        return 52 + sidx[0]
    def issue(s):
        st = s % NS
        sb = stemp()
        e(f"s_add_u32 s{sb}, s7, {32*s*896}")
        for j in range(8):
            if j < 4: tokB[s] = k.vload("buffer_load_dwordx2", BRAW(st, j), V(6), SB, f"s{sb}", offset=j*896, flags=WOF)
            else: tokB[s] = k.vload("buffer_load_dwordx2", BRAW(st, j), V(7), SB, f"s{sb}", offset=(j-4)*896, flags=WOF)
        for m in range(4):
            tokA[s] = k.vload("buffer_load_dwordx4", AFR(st, m), V(5), SA, f"s{64+m*4+(s>>2)}", offset=(s&3)*1024, flags=OLDF)
    for s in range(NS): issue(s)
    k.stamp()
    for s in range(16):
        st = s % NS
        k.wait_vm(tokB[s])
        for t in range(4):
            for i in range(4):
                hi = BRAW(st, 2*i+1); lo = BRAW(st, 2*i)
                k.valu("v_perm_b32", V(16 + t*4 + i), V(hi[1] + (t >> 1)), V(lo[1] + (t >> 1)), "s35" if (t & 1) else "s34")
        k.wait_vm(tokA[s])
        for m in range(4):
            for t in range(4):
                k.mfma(ACC(m, t), AFR(st, m), V(16 + t*4, 4), ACC(m, t) if s else 0)
        if s + NS < 16: issue(s + NS)
    k.stamp()
    k.valu("v_lshlrev_b32", V(8), 4, V(1))
    k.valu("v_lshl_add_u32", V(8), V(4), 14, V(8))
    for m in range(4):
        for t in range(4):
            k.dswrite("ds_write_b128", V(8), ACC(m, t), (m*4+t)*1024)
    k.wait_lg_all()
    k.barrier()
    k.valu("v_lshrrev_b32", V(9), 1, V(4))
    k.valu("v_and_b32", V(10), 1, V(4))
    k.valu("v_lshlrev_b32", V(8), 4, V(1))
    k.valu("v_lshl_add_u32", V(8), V(9), 12, V(8))
    k.valu("v_lshl_add_u32", V(8), V(10), 3, V(8))
    k.valu("v_add_u32", V(11), 65536, V(8))
    for t in range(4):
        for w in range(8):
            off = w*16384 + t*1024
            k.dsread("ds_read_b64", V(96 + (t*8 + w)*2, 2), V(8) if off < 65536 else V(11), off % 65536)
    k.wait_lg_all()
    for t in range(4):
        b = 96 + t*16
        for q in range(2):
            k.valu("v_add_f32", V(b+q), V(b+q), V(b+2+q))
            k.valu("v_add_f32", V(b+4+q), V(b+4+q), V(b+6+q))
            k.valu("v_add_f32", V(b+8+q), V(b+8+q), V(b+10+q))
            k.valu("v_add_f32", V(b+12+q), V(b+12+q), V(b+14+q))
        for q in range(2):
            k.valu("v_add_f32", V(b+q), V(b+q), V(b+4+q))
            k.valu("v_add_f32", V(b+8+q), V(b+8+q), V(b+12+q))
        for q in range(2):
            k.valu("v_add_f32", V(b+q), V(b+q), V(b+8+q))
    k.valu("v_lshlrev_b32", V(12), 4, V(9))
    k.valu("v_lshl_add_u32", V(12), V(3), 2, V(12))
    k.valu("v_lshl_add_u32", V(12), V(10), 1, V(12))
    k.valu("v_mul_u32_u24", V(12), 896, V(12))
    k.valu("v_lshl_add_u32", V(12), V(2), 3, V(12))
    e("s_mul_i32 s6, s4, 57344")
    e("s_add_u32 s6, s6, s7")
    for q in range(2):
        k.valu("v_cvt_pk_bf16_f32", V(16+q*2), V(96+q), V(112+q))
        k.valu("v_cvt_pk_bf16_f32", V(17+q*2), V(128+q), V(144+q))
        k.vstore("buffer_store_dwordx2", V(16+q*2, 2), V(12), SOUT, "s6", offset=q*896)
    k.wait_vm_all()
    k.stamp()
    if DBG:
        k.raw("v_readfirstlane_b32 s57, v4")
        k.raw("s_nop 4")
    k.dump("s57", 16)
    k.label("L_op_end")
    e("s_endpgm")
    return k

HEADER = """; Kernarg layout for this problem (64 bytes, ptrs only, base s[0:1]):
;   offset   0: d_in[0] x  shape=(16, 144, 448) dtype=bfloat16 strides=(129024, 896, 2) contiguous=True
;   offset   8: d_in[1] k_cache  shape=(16, 16, 512, 256) dtype=bfloat16 strides=(4194304, 262144, 512, 2) contiguous=True
;   offset  16: d_in[2] v_cache  shape=(16, 16, 512, 256) dtype=bfloat16 strides=(4194304, 262144, 512, 2) contiguous=True
;   offset  24: d_in[3] wq  shape=(448, 4096) dtype=bfloat16 strides=(8192, 2) contiguous=True
;   offset  32: d_in[4] wo  shape=(4096, 448) dtype=bfloat16 strides=(896, 2) contiguous=True
;   offset  40: d_out     shape=(16, 144, 448) dtype=bfloat16 (2 bytes/elem)
;   offset  48: d_debug   256 bytes
;   offset  56: d_ws      268435456 bytes workspace
; Generated by a Python generator script (hand-designed schedule).
; Launch 1: fused Q-projection + attention per (batch, head); writes O (bf16) to d_ws.
; Launch 2: output projection O @ Wo.
; @launch kernel=standalone__mha_block_cached__near_ridge_kernel grid=(256,1,1) block=(256,1,1) lds=%d
; @launch kernel=oproj_kernel grid=(256,1,1) block=(512,1,1) lds=131072
.amdgcn_target "amdgcn-amd-amdhsa--gfx950"
.text
""" % LDS1

def main():
    a = gen_attn(); o = gen_oproj()
    s = HEADER
    s += ".globl standalone__mha_block_cached__near_ridge_kernel\n.p2align 8\n.type standalone__mha_block_cached__near_ridge_kernel,@function\n"
    s += a.text()
    s += ".globl oproj_kernel\n.p2align 8\n.type oproj_kernel,@function\n"
    s += o.text()
    s += """.section .rodata,"a"
.p2align 6
.amdhsa_kernel standalone__mha_block_cached__near_ridge_kernel
  .amdhsa_next_free_vgpr 512
  .amdhsa_next_free_sgpr 96
  .amdhsa_accum_offset 256
  .amdhsa_group_segment_fixed_size 0
  .amdhsa_kernarg_size 64
  .amdhsa_user_sgpr_count 2
  .amdhsa_user_sgpr_kernarg_segment_ptr 1
  .amdhsa_system_sgpr_workgroup_id_x 1
.end_amdhsa_kernel
.p2align 6
.amdhsa_kernel oproj_kernel
  .amdhsa_next_free_vgpr 256
  .amdhsa_next_free_sgpr 96
  .amdhsa_accum_offset 256
  .amdhsa_group_segment_fixed_size 0
  .amdhsa_kernarg_size 64
  .amdhsa_user_sgpr_count 2
  .amdhsa_user_sgpr_kernarg_segment_ptr 1
  .amdhsa_system_sgpr_workgroup_id_x 1
.end_amdhsa_kernel
"""
    out = sys.argv[1] if len(sys.argv) > 1 else "standalone__mha_block_cached__near_ridge.s"
    open(out, "w").write(s)
    print("attn counts", a.count, "nops", a.nops)
    print("oproj counts", o.count, "nops", o.nops)

main()
```

```python
import sys, math
sys.path.insert(0, 'gen')
from asmlib import *

C1 = math.log2(math.e) / 16.0
import os
DBG = int(os.environ.get('DBG','0'))
DBGWG = int(os.environ.get('DBGWG','37'))
KRATE = int(os.environ.get('KRATE','3'))
K0 = int(os.environ.get('K0','16'))
KFLAGS = os.environ.get('KFLAGS',' nt')
OSTF = os.environ.get('OSTF','')
OLDF = os.environ.get('OLDF','')
WOF = os.environ.get('WOF','')
WQF = os.environ.get('WQF','')
XF = os.environ.get('XF','')
LDS_MX = 147456
LDS_SUM = LDS_MX + 2304
LDS_OST = LDS_SUM + 2304
LDS1 = LDS_OST + 8192

def add_stamp(k, sb=64):
    k.nst = 0
    def stamp():
        if not DBG: return
        k.raw("s_memtime s[62:63]")
        k.raw("s_waitcnt lgkmcnt(0)")
        k.raw(f"s_mov_b32 s{sb+k.nst}, s62")
        k.nst += 1
    k.stamp = stamp
    def dump(waveS, base):
        if not DBG: return
        k.raw(f"s_cmp_lg_u32 s2, {DBGWG}")
        k.raw(f"s_cbranch_scc1 L_nodump{base}")
        k.raw("s_load_dwordx2 s[60:61], s[0:1], 48")
        k.raw("s_waitcnt lgkmcnt(0)")
        k.raw("s_mov_b32 s62, 256")
        k.raw("s_mov_b32 s63, 0x20000")
        k.raw(f"v_mov_b32 v1, 0")
        k.raw(f"s_cmp_lg_u32 {waveS}, 0")
        k.raw(f"s_cbranch_scc1 L_nodump{base}")
        for i in range(k.nst):
            k.raw(f"s_sub_u32 s58, s{sb+i}, s{sb}")
            k.raw(f"v_mov_b32 v2, s58")
            k.raw(f"buffer_store_dword v2, v1, s[60:63], 0 offen offset:{(base+i)*4}")
        k.raw("s_waitcnt vmcnt(0)")
        k.label(f"L_nodump{base}")
    k.dump = dump

def gen_attn():
    k = Asm()
    add_stamp(k)
    e = k.raw
    k.label("standalone__mha_block_cached__near_ridge_kernel")
    e("s_cmp_ge_u32 s2, 256")
    e("s_cbranch_scc1 L_attn_end")
    k.stamp()
    e("s_load_dwordx8 s[36:43], s[0:1], 0")
    e("s_load_dwordx2 s[44:45], s[0:1], 56")
    e("v_and_b32 v1, 63, v0")
    e("v_and_b32 v2, 15, v0")
    e("v_lshrrev_b32 v3, 4, v1")
    e("v_lshrrev_b32 v27, 6, v0")
    e("s_lshr_b32 s3, s2, 4")
    e("s_and_b32 s4, s2, 15")
    e("v_readfirstlane_b32 s5, v27")
    e("s_mov_b32 s33, " + f32hex(C1))
    e("s_mov_b32 s34, 0x05040100")
    e("s_mov_b32 s35, 0x07060302")
    e("v_lshrrev_b32 v28, 1, v3")
    e("v_xor_b32 v29, v3, v28")
    e("v_and_b32 v29, 1, v29")
    e("v_lshl_or_b32 v29, v29, 1, v28")
    e("v_and_b32 v30, 3, v1")
    e("v_xor_b32 v29, v29, v30")
    e("v_lshrrev_b32 v30, 2, v1")
    e("v_mul_u32_u24 v4, 896, v30")
    e("v_lshl_add_u32 v4, v29, 4, v4")
    e("v_lshl_add_u32 v4, v27, 6, v4")
    e("v_lshrrev_b32 v30, 2, v2")
    e("v_lshrrev_b32 v28, 1, v30")
    e("v_xor_b32 v29, v30, v28")
    e("v_and_b32 v29, 1, v29")
    e("v_lshl_or_b32 v29, v29, 1, v28")
    e("v_xor_b32 v29, v29, v3")
    e("v_lshlrev_b32 v5, 6, v2")
    e("v_lshl_add_u32 v5, v29, 4, v5")
    e("v_add_u32 v6, 0x10000, v5")
    e("v_lshlrev_b32 v7, 3, v2")
    e("v_lshl_add_u32 v7, v3, 16, v7")
    e("v_lshrrev_b32 v28, 1, v3")
    e("v_xor_b32 v29, v3, v28")
    e("v_and_b32 v29, 1, v29")
    e("v_lshl_or_b32 v29, v29, 1, v28")
    e("v_and_b32 v30, 3, v1")
    e("v_xor_b32 v29, v29, v30")
    e("v_lshrrev_b32 v30, 2, v1")
    e("v_lshlrev_b32 v8, 9, v30")
    e("v_lshl_add_u32 v8, v29, 4, v8")
    e("v_lshlrev_b32 v0, 4, v1")
    e("v_lshl_add_u32 v0, v27, 12, v0")
    e(f"v_add_u32 v0, {73728}, v0")
    e("v_lshlrev_b32 v9, 3, v2")
    e("v_lshl_add_u32 v9, v3, 12, v9")
    e("v_xor_b32 v28, v3, v2")
    e("v_lshlrev_b32 v28, 4, v28")
    e("v_lshl_add_u32 v18, v2, 9, v28")
    e("v_lshl_add_u32 v23, v2, 10, v28")
    e("v_lshrrev_b32 v28, 1, v3")
    e("v_xor_b32 v28, v28, v2")
    e("v_lshlrev_b32 v28, 4, v28")
    e("v_lshl_add_u32 v21, v2, 10, v28")
    e("v_lshl_add_u32 v21, v27, 8, v21")
    e("v_and_b32 v28, 1, v3")
    e("v_lshl_add_u32 v21, v28, 3, v21")
    e("s_lshl_b32 s28, s5, 10")
    e("s_lshl_b32 s29, s4, 9")
    e("s_lshl_b32 s6, s5, 7")
    e("s_add_u32 s29, s29, s6")
    e("s_lshl_b32 s30, s5, 16")
    e("s_mov_b32 s31, s6")
    e("s_mul_i32 s32, s3, 1179648")
    e("s_lshl_b32 s6, s4, 13")
    e("s_add_u32 s32, s32, s6")
    e("s_lshl_b32 s6, s5, 11")
    e("s_add_u32 s32, s32, s6")
    for t in range(8):
        e(f"s_add_u32 s{48+t}, s30, {t*8192}")
    e("s_waitcnt lgkmcnt(0)")
    e("s_mul_i32 s6, s3, 129024")
    e("s_add_u32 s8, s36, s6")
    e("s_addc_u32 s9, s37, 0")
    e("s_mov_b32 s10, 129024")
    e("s_mov_b32 s11, 0x20000")
    e("s_mov_b32 s12, s42")
    e("s_mov_b32 s13, s43")
    e("s_mov_b32 s14, 3670016")
    e("s_mov_b32 s15, 0x20000")
    e("s_lshl_b32 s6, s2, 18")
    e("s_add_u32 s16, s38, s6")
    e("s_addc_u32 s17, s39, 0")
    e("s_mov_b32 s18, 262144")
    e("s_mov_b32 s19, 0x20000")
    e("s_add_u32 s20, s40, s6")
    e("s_addc_u32 s21, s41, 0")
    e("s_mov_b32 s22, 262144")
    e("s_mov_b32 s23, 0x20000")
    e("s_mov_b32 s24, s44")
    e("s_mov_b32 s25, s45")
    e("s_mov_b32 s26, 18874368")
    e("s_mov_b32 s27, 0x20000")
    SX, SWQ, SK, SV, SO = "s[8:11]", "s[12:15]", "s[16:19]", "s[20:23]", "s[24:27]"

    def dma(sp, m):
        e(f"s_add_u32 m0, s28, {m*14336 + sp*4096}")
        e(f"s_mov_b32 s46, {m*14336 + sp*256}")
        return k.vdma(V(4), SX, "s46", flags=XF)
    e("s_cmp_ge_u32 s5, 2")
    e("s_cbranch_scc1 L_skipdma")
    for m in range(9):
        dma(3, m)
    k.label("L_skipdma")

    WRAW = lambda st, j: V(32 + st*16 + j*2, 2)
    WFR = lambda st, t: V(96 + st*16 + t*4, 4)
    FR = lambda m: V(176 + m*4, 4)
    ACCQ = lambda m, t: A((m*4+t)*4, 4)
    VB_A = [V(128 + 4*i, 4) for i in range(12)]
    VB_B = [V(212 + 4*i, 4) for i in range(8)]
    AR = [A(144 + 4*i, 4) for i in range(28)]
    init_slots = VB_A + VB_B + AR
    stmp = [46, 47, 58, 59]
    sidx = [0]
    def stemp():
        sidx[0] = (sidx[0] + 1) % len(stmp)
        return stmp[sidx[0]]

    wq_tok = {}
    def issue_wq(s):
        for j in range(8):
            st = stemp()
            e(f"s_add_u32 s{st}, s29, {(32*s+j)*8192}")
            wq_tok[s] = k.vload("buffer_load_dwordx2", WRAW(s % 4, j), V(7), SWQ, f"s{st}", flags=WQF)
    k_tok = {}
    k_slot = {}
    k_next = [0]
    korder = [(2*sp + ee, t) for sp in range(4) for t in range(4, 8) for ee in range(2)] + \
             [(2*sp + ee, t) for sp in range(4) for t in range(0, 4) for ee in range(2)]
    def issue_k(slot):
        s_, t = korder[k_next[0]]; k_next[0] += 1
        i = s_*8 + t
        k_slot[i] = slot
        k_tok[i] = k.vload("buffer_load_dwordx4", slot, V(8), SK, f"s{48+t}", offset=s_*64, flags=KFLAGS)
    kp_tok = {}
    ksc = [0]
    def kperm(i):
        k.wait_vm(k_tok[i])
        sl = k_slot[i]
        off = (ksc[0] % 4) * 1024; ksc[0] += 1
        k.dswrite("ds_write_b128", V(0), sl, off)
        kp_tok[i] = k.dsread("ds_read_b128", sl, V(5), off)
    v_tok = {}
    v_reg = {}
    def issue_v(u, regs):
        st = stemp()
        e(f"s_add_u32 s{st}, s31, {u*16384}")
        v_reg[u] = regs
        for j in range(8):
            v_tok[u] = k.vload("buffer_load_dwordx2", regs[j], V(9), SV, f"s{st}", offset=j*512, flags=KFLAGS)

    def perm_fill(raws, out):
        fl = []
        for t in range(4):
            for i in range(4):
                hi = raws[2*i+1]; lo = raws[2*i]
                def f(t=t, i=i, hi=hi, lo=lo):
                    o = out(t)
                    k.valu("v_perm_b32", V(o[1]+i), V(hi[1] + (t >> 1)), V(lo[1] + (t >> 1)), "s35" if (t & 1) else "s34")
                fl.append(f)
        return fl

    xtok = {}
    ring_next = 0
    for _ in range(K0):
        issue_k(init_slots[ring_next]); ring_next += 1
    for m in range(9): xtok[0] = dma(0, m)
    issue_wq(0); issue_wq(1)
    k.wait_vm(xtok[0])
    k.barrier()
    k.stamp()
    for m in range(9): xtok[1] = dma(1, m)
    issue_wq(2)
    def xread(m, s):
        off = (m*14 + s) * 1024
        if off < 65536: return k.dsread("ds_read_b128", FR(m), V(5), off)
        return k.dsread("ds_read_b128", FR(m), V(6), off - 65536)
    fr_tok = {}
    for m in range(9): fr_tok[m] = xread(m, 0)
    k.wait_vm(wq_tok[0])
    for f in perm_fill([WRAW(0, j) for j in range(8)], lambda t: WFR(0, t)): f()
    for s in range(14):
        if s in (3, 7):
            k.wait_vm(xtok[(s+1)//4])
            k.barrier()
        fill = []
        if s == 1:
            def dma2():
                for m in range(9): xtok[2] = dma(2, m)
            fill.append(dma2)
        if s + 3 < 14:
            fill.append(lambda s=s: issue_wq(s+3))
        def kfill():
            nonlocal ring_next
            for _ in range(KRATE):
                if ring_next < len(init_slots):
                    issue_k(init_slots[ring_next]); ring_next += 1
        fill.append(kfill)
        if s + 1 < 14:
            fill.append(lambda s=s: k.wait_vm(wq_tok[s+1]))
            fill += perm_fill([WRAW((s+1) % 4, j) for j in range(8)], lambda t, s=s: WFR((s+1) % 2, t))
        for m in range(9):
            k.wait_lg(fr_tok[m])
            for t in range(4):
                k.mfma(ACCQ(m, t), FR(m), WFR(s % 2, t), ACCQ(m, t) if s else 0)
                if m >= 1 and fill:
                    fill.pop(0)()
            if s + 1 < 14: fr_tok[m] = xread(m, s+1)
        while fill: fill.pop(0)()
    k.stamp()
    while ring_next < len(init_slots):
        issue_k(init_slots[ring_next]); ring_next += 1
    k.stamp()
    k.barrier()
    k.valu("v_and_b32", V(28), 1, V(27))
    k.valu("v_lshlrev_b32", V(28), 3, V(28))
    k.valu("v_lshrrev_b32", V(29), 1, V(2))
    k.valu("v_add_u32", V(28), V(28), V(29))
    k.valu("v_lshrrev_b32", V(29), 1, V(27))
    k.valu("v_lshlrev_b32", V(29), 8, V(29))
    k.valu("v_and_b32", V(30), 1, V(2))
    k.valu("v_lshl_add_u32", V(29), V(30), 3, V(29))
    for r in range(4):
        k.valu("v_lshl_add_u32", V(30), V(3), 2, r)
        k.valu("v_xor_b32", V(31), V(28), V(30))
        k.valu("v_lshl_add_u32", V(10+r), V(31), 4, V(29))
        k.valu("v_lshl_add_u32", V(10+r), V(30), 9, V(10+r))
        k.valu("v_add_u32", V(14+r), 32768, V(10+r))
    tb = 244
    for m in range(9):
        for r in range(4):
            T = tb + ((m*4 + r) % 2) * 6
            for t in range(4):
                k.valu("v_accvgpr_read_b32", V(T+t), A((m*4+t)*4 + r))
            k.valu("v_cvt_pk_bf16_f32", V(T+4), V(T), V(T+1))
            k.valu("v_cvt_pk_bf16_f32", V(T+5), V(T+2), V(T+3))
            if m < 4: k.dswrite("ds_write_b64", V(10+r), V(T+4, 2), m*8192)
            else: k.dswrite("ds_write_b64", V(14+r), V(T+4, 2), (m-4)*8192)
    k.wait_lg_all()
    k.barrier()
    k.stamp()

    def ACCS(t, m):
        if t < 4: return V(32 + (m*4 + t)*4, 4)
        return A((m*4 + (t-4))*4, 4)
    def qaddr(s):
        k.valu("v_xor_b32", V(19), (s & 3) << 6, V(18))
        k.valu("v_add_u32", V(20), 65536, V(19))
    def qread(m, s):
        off = m*8192 + (s >> 2)*256
        if off < 65536: return k.dsread("ds_read_b128", FR(m), V(19), off)
        return k.dsread("ds_read_b128", FR(m), V(20), off - 65536)
    k.valu("v_lshl_add_u32", V(5), V(27), 12, V(5))
    k.valu("v_add_u32", V(5), 73728, V(5))
    seq = [(p, s_) for p in (0, 1) for s_ in range(8)]
    tiles = lambda p: range(4, 8) if p == 0 else range(0, 4)
    qaddr(0)
    for t in tiles(0): kperm(t)
    for m in range(9): fr_tok[m] = qread(m, 0)
    v_next = 0
    vfree = []
    for idx, (p, s) in enumerate(seq):
        nxt = seq[idx+1] if idx + 1 < len(seq) else None
        if nxt: qaddr(nxt[1])
        for m in range(9):
            k.wait_lg(fr_tok[m])
            for t in tiles(p):
                i = s*8 + t
                k.wait_lg(kp_tok[i])
                k.mfma(ACCS(t, m), k_slot[i], FR(m), ACCS(t, m) if s else 0)
            if nxt:
                fr_tok[m] = qread(m, nxt[1])
                if 1 <= m < 5: kperm(nxt[1]*8 + list(tiles(nxt[0]))[m-1])
        for t in tiles(p):
            sl = k_slot[s*8 + t]
            if sl in VB_A: continue
            if k_next[0] < 64: issue_k(sl)
            elif sl in AR: vfree.append(sl)
        while len(vfree) >= 4 and v_next < 7:
            sls = vfree[:4]; vfree = vfree[4:]
            regs = []
            for sl in sls:
                regs += [A(sl[1], 2), A(sl[1] + 2, 2)]
            issue_v(v_next, regs); v_next += 1
    assert v_next == 7, v_next

    k.stamp()
    NEGM = lambda m: V(212 + m)
    PSUM = lambda m: V(221 + m)
    k.valu("v_lshlrev_b32", V(28), 4, V(2))
    k.valu("v_lshl_add_u32", V(28), V(27), 2, V(28))
    k.valu("v_add_u32", V(28), LDS_MX, V(28))
    k.valu("v_lshlrev_b32", V(29), 4, V(2))
    k.valu("v_add_u32", V(29), LDS_MX, V(29))
    for m in range(9):
        mx = NEGM(m)
        vals = []
        for t in range(4):
            b = ACCS(t, m)[1]
            vals += [V(b+r) for r in range(4)]
        k.valu("v_max3_f32", mx, vals[0], vals[1], vals[2])
        k.valu("v_max3_f32", mx, vals[3], vals[4], mx)
        for i in range(5, 15, 2):
            k.valu("v_max3_f32", mx, vals[i], vals[i+1], mx)
        k.valu("v_max_f32", mx, vals[15], mx)
        for t in range(4, 8):
            b = ACCS(t, m)[1]
            T = 176 + (t-4)*4
            for r in range(4):
                k.valu("v_accvgpr_read_b32", V(T+r), A(b+r))
        for t in range(4, 8):
            T = 176 + (t-4)*4
            k.valu("v_max3_f32", mx, V(T), V(T+1), mx)
            k.valu("v_max3_f32", mx, V(T+2), V(T+3), mx)
        k.valu("v_mov_b32", V(230), mx)
        k.valu("v_permlane32_swap_b32", V(230), mx, permlane=True, extra_w=(mx,))
        k.valu("v_max_f32", mx, V(230), mx)
        k.valu("v_mov_b32", V(230), mx)
        k.valu("v_permlane16_swap_b32", V(230), mx, permlane=True, extra_w=(mx,))
        k.valu("v_max_f32", mx, V(230), mx)
        k.dswrite("ds_write_b32", V(28), mx, m*256)
    k.wait_lg_all()
    k.barrier()
    k.stamp()
    toks = []
    for m in range(9):
        toks.append(k.dsread("ds_read_b128", V(176 + m*4, 4), V(29), m*256))
    k.valu("v_mov_b32", V(231), "s33")
    for m in range(9):
        k.wait_lg(toks[m])
        T = 176 + m*4
        k.valu("v_max3_f32", NEGM(m), V(T), V(T+1), V(T+2))
        k.valu("v_max_f32", NEGM(m), V(T+3), NEGM(m))
        k.valu("v_mul_f32", NEGM(m), V(231), NEGM(m))
        k.valu("v_sub_f32", NEGM(m), 0, NEGM(m))
    tsel = 0
    for m in range(9):
        if m == 0: k.valu("v_mov_b32", V(22), V(21))
        else: k.valu("v_add_u32", V(22), m*16384, V(21))
        first = True
        for t in range(8):
            if t < 4:
                b = ACCS(t, m)[1]
                S = [V(b+r) for r in range(4)]
            else:
                T = 176 + (tsel % 4)*4; tsel += 1
                ab = ACCS(t, m)[1]
                for r in range(4):
                    k.valu("v_accvgpr_read_b32", V(T+r), A(ab+r))
                S = [V(T+r) for r in range(4)]
            for r in range(4):
                k.valu("v_fma_f32", S[r], S[r], "s33", NEGM(m))
            for r in range(4):
                k.valu("v_exp_f32", S[r], S[r], trans=True)
            P = 232 + (t % 4)*2
            AD = 240 + (t % 4)
            k.valu("v_xor_b32", V(AD), t << 5, V(22))
            k.valu("v_cvt_pk_bf16_f32", V(P), S[0], S[1])
            k.valu("v_cvt_pk_bf16_f32", V(P+1), S[2], S[3])
            if first:
                k.valu("v_add_f32", PSUM(m), S[0], S[1]); first = False
            else:
                k.valu("v_add_f32", PSUM(m), S[0], PSUM(m))
                k.valu("v_add_f32", PSUM(m), S[1], PSUM(m))
            k.valu("v_add_f32", PSUM(m), S[2], PSUM(m))
            k.valu("v_add_f32", PSUM(m), S[3], PSUM(m))
            k.dswrite("ds_write_b64", V(AD), V(P, 2))
        if m % 2 == 1:
            j_ = m // 2
            k.wait_vm(v_tok[j_])
            issue_v(7 + j_, [V(32 + j_*16 + 2*j, 2) for j in range(8)])
    k.valu("v_mul_u32_u24", V(28), 576, V(27))
    k.valu("v_lshl_add_u32", V(28), V(2), 2, V(28))
    k.valu("v_add_u32", V(28), LDS_SUM, V(28))
    for m in range(9):
        ps = PSUM(m)
        k.valu("v_mov_b32", V(230), ps)
        k.valu("v_permlane32_swap_b32", V(230), ps, permlane=True, extra_w=(ps,))
        k.valu("v_add_f32", ps, V(230), ps)
        k.valu("v_mov_b32", V(230), ps)
        k.valu("v_permlane16_swap_b32", V(230), ps, permlane=True, extra_w=(ps,))
        k.valu("v_add_f32", ps, V(230), ps)
        k.dswrite("ds_write_b32", V(28), ps, m*64)
    k.wait_lg_all()
    k.barrier()
    k.stamp()

    ACCO = lambda m, t: A((m*4+t)*4, 4)
    VFR = lambda st, t: V(212 + st*16 + t*4, 4)
    def paddr(u):
        k.valu("v_xor_b32", V(24), (u & 3) << 6, V(23))
        k.valu("v_add_u32", V(25), 65536, V(24))
        k.valu("v_add_u32", V(26), 131072, V(24))
    def pread(m, u):
        off = m*16384 + (u >> 2)*256
        return k.dsread("ds_read_b128", FR(m), V(24 + off // 65536), off % 65536)
    def vprep(u):
        fl = [lambda: k.wait_vm(v_tok[u])]
        regs = v_reg[u]
        if regs[0][0] == 'a':
            tmp = [244, 246, 248, 250, 252, 254, 10, 12]
            for j in range(8):
                for q in range(2):
                    fl.append(lambda j=j, q=q: k.valu("v_accvgpr_read_b32", V(tmp[j]+q), A(regs[j][1]+q)))
            raws = [V(tmp[j], 2) for j in range(8)]
        else:
            raws = regs
        fl += perm_fill(raws, lambda t: VFR(u % 2, t))
        return fl
    paddr(0)
    for m in range(9): fr_tok[m] = pread(m, 0)
    for f in vprep(0): f()
    for u in range(16):
        fill = []
        if u + 1 < 16:
            paddr(u+1)
            fill = vprep(u+1)
        if 11 + u < 16:
            fill.insert(1, lambda u=u: issue_v(11 + u, [V(32 + (4+u)*16 + 2*j, 2) for j in range(8)]))
        for m in range(9):
            k.wait_lg(fr_tok[m])
            for t in range(4):
                k.mfma(ACCO(m, t), FR(m), VFR(u % 2, t), ACCO(m, t) if u else 0)
                if fill: fill.pop(0)()
            if u + 1 < 16: fr_tok[m] = pread(m, u+1)
        while fill: fill.pop(0)()

    k.stamp()
    k.valu("v_lshlrev_b32", V(28), 4, V(3))
    k.valu("v_add_u32", V(28), LDS_SUM, V(28))
    for m in range(9):
        for w in range(4):
            k.dsread("ds_read_b128", V(32 + (m*4+w)*4, 4), V(28), w*576 + m*64)
    k.valu("v_lshrrev_b32", V(29), 1, V(2))
    k.valu("v_lshlrev_b32", V(30), 2, V(3))
    k.valu("v_xor_b32", V(30), V(30), V(29))
    k.valu("v_lshlrev_b32", V(30), 4, V(30))
    k.valu("v_lshl_add_u32", V(30), V(29), 8, V(30))
    k.valu("v_and_b32", V(29), 1, V(2))
    k.valu("v_lshl_add_u32", V(30), V(29), 3, V(30))
    k.valu("v_lshl_add_u32", V(30), V(27), 11, V(30))
    k.valu("v_add_u32", V(10), LDS_OST, V(30))
    for r in range(1, 4):
        k.valu("v_xor_b32", V(10+r), r << 4, V(10))
    k.valu("v_xor_b32", V(30), V(2), V(3))
    k.valu("v_lshlrev_b32", V(30), 4, V(30))
    k.valu("v_lshl_add_u32", V(30), V(3), 8, V(30))
    k.valu("v_lshl_add_u32", V(30), V(27), 11, V(30))
    k.valu("v_add_u32", V(14), LDS_OST, V(30))
    k.valu("v_xor_b32", V(15), 64, V(14))
    k.valu("v_lshlrev_b32", V(16), 4, V(1))
    k.wait_lg_all()
    for m in range(9):
        b = 32 + m*16
        for r in range(4):
            k.valu("v_add_f32", V(b+r), V(b+r), V(b+4+r))
            k.valu("v_add_f32", V(b+8+r), V(b+8+r), V(b+12+r))
        for r in range(4):
            k.valu("v_add_f32", V(b+r), V(b+r), V(b+8+r))
        for r in range(4):
            k.valu("v_rcp_f32", V(b+r), V(b+r), trans=True)
    pend = None
    for m in range(9):
        b = 32 + m*16
        for r in range(4):
            T = 176 + ((m*4 + r) % 4) * 6
            for t in range(4):
                k.valu("v_accvgpr_read_b32", V(T+t), A((m*4+t)*4 + r))
            for t in range(4):
                k.valu("v_mul_f32", V(T+t), V(T+t), V(b+r))
            k.valu("v_cvt_pk_bf16_f32", V(T+4), V(T), V(T+1))
            k.valu("v_cvt_pk_bf16_f32", V(T+5), V(T+2), V(T+3))
            k.dswrite("ds_write_b64", V(10+r), V(T+4, 2))
        RB = 212 + (m % 2)*8
        t0 = k.dsread("ds_read_b128", V(RB, 4), V(14))
        t1 = k.dsread("ds_read_b128", V(RB+4, 4), V(15), 1024)
        if pend is not None:
            pm, pRB, pt1 = pend
            k.wait_lg(pt1)
            st = stemp()
            e(f"s_add_u32 s{st}, s32, {pm*131072}")
            k.vstore("buffer_store_dwordx4", V(pRB, 4), V(16), SO, f"s{st}", flags=OSTF)
            k.vstore("buffer_store_dwordx4", V(pRB+4, 4), V(16), SO, f"s{st}", offset=1024, flags=OSTF)
        pend = (m, RB, t1)
    pm, pRB, pt1 = pend
    k.wait_lg(pt1)
    st = stemp()
    e(f"s_add_u32 s{st}, s32, {pm*131072}")
    k.vstore("buffer_store_dwordx4", V(pRB, 4), V(16), SO, f"s{st}", flags=OSTF)
    k.vstore("buffer_store_dwordx4", V(pRB+4, 4), V(16), SO, f"s{st}", offset=1024, flags=OSTF)
    k.stamp()
    k.wait_vm_all()
    k.stamp()
    k.dump("s5", 0)
    k.label("L_attn_end")
    e("s_endpgm")
    return k

def gen_oproj():
    k = Asm()
    add_stamp(k, 84)
    e = k.raw
    k.label("oproj_kernel")
    e("s_cmp_ge_u32 s2, 256")
    e("s_cbranch_scc1 L_op_end")
    e("s_and_b32 s3, s2, 7")
    e("s_lshl_b32 s3, s3, 5")
    e("s_lshr_b32 s4, s2, 3")
    e("s_add_u32 s3, s3, s4")
    e("s_cmp_ge_u32 s3, 252")
    e("s_cbranch_scc1 L_op_end")
    k.stamp()
    e("s_load_dwordx4 s[36:39], s[0:1], 32")
    e("s_load_dwordx2 s[40:41], s[0:1], 56")
    e("s_mul_i32 s4, s3, 9363")
    e("s_lshr_b32 s4, s4, 16")
    e("s_mul_i32 s5, s4, 7")
    e("s_sub_u32 s5, s3, s5")
    e("v_and_b32 v1, 63, v0")
    e("v_and_b32 v2, 15, v0")
    e("v_lshrrev_b32 v3, 4, v1")
    e("v_lshrrev_b32 v4, 6, v0")
    e("s_mov_b32 s34, 0x05040100")
    e("s_mov_b32 s35, 0x07060302")
    e("v_lshlrev_b32 v5, 4, v1")
    e("v_lshl_add_u32 v5, v4, 14, v5")
    e("v_mul_u32_u24 v6, 7168, v3")
    e("v_lshl_add_u32 v6, v2, 3, v6")
    e("s_mov_b32 s6, 458752")
    e("v_mul_lo_u32 v7, s6, v4")
    e("v_add_u32 v6, v6, v7")
    e("v_add_u32 v7, 3584, v6")
    e("s_lshl_b32 s6, s4, 19")
    for m in range(4):
        for q in range(4):
            e(f"s_add_u32 s{64+m*4+q}, s6, {m*131072 + q*4096}")
    e("s_lshl_b32 s7, s5, 7")
    e("s_waitcnt lgkmcnt(0)")
    e("s_mov_b32 s8, s40"); e("s_mov_b32 s9, s41"); e("s_mov_b32 s10, 18874368"); e("s_mov_b32 s11, 0x20000")
    e("s_mov_b32 s12, s36"); e("s_mov_b32 s13, s37"); e("s_mov_b32 s14, 3670016"); e("s_mov_b32 s15, 0x20000")
    e("s_mov_b32 s16, s38"); e("s_mov_b32 s17, s39"); e("s_mov_b32 s18, 2064384"); e("s_mov_b32 s19, 0x20000")
    SA, SB, SOUT = "s[8:11]", "s[12:15]", "s[16:19]"
    NS = 5
    AFR = lambda st, m: V(96 + st*32 + m*4, 4)
    BRAW = lambda st, j: V(96 + st*32 + 16 + j*2, 2)
    BFR = lambda st, t: V(16 + st*8*0 + t*4, 4) if False else V(16 + (st % 1)*16 + t*4, 4)
    ACC = lambda m, t: V(32 + (m*4+t)*4, 4)
    tokA = {}; tokB = {}
    sidx = [0]
    def stemp():
        sidx[0] = (sidx[0] + 1) % 4
        return 52 + sidx[0]
    def issue(s):
        st = s % NS
        sb = stemp()
        e(f"s_add_u32 s{sb}, s7, {32*s*896}")
        for j in range(8):
            if j < 4: tokB[s] = k.vload("buffer_load_dwordx2", BRAW(st, j), V(6), SB, f"s{sb}", offset=j*896, flags=WOF)
            else: tokB[s] = k.vload("buffer_load_dwordx2", BRAW(st, j), V(7), SB, f"s{sb}", offset=(j-4)*896, flags=WOF)
        for m in range(4):
            tokA[s] = k.vload("buffer_load_dwordx4", AFR(st, m), V(5), SA, f"s{64+m*4+(s>>2)}", offset=(s&3)*1024, flags=OLDF)
    for s in range(NS): issue(s)
    k.stamp()
    for s in range(16):
        st = s % NS
        k.wait_vm(tokB[s])
        for t in range(4):
            for i in range(4):
                hi = BRAW(st, 2*i+1); lo = BRAW(st, 2*i)
                k.valu("v_perm_b32", V(16 + t*4 + i), V(hi[1] + (t >> 1)), V(lo[1] + (t >> 1)), "s35" if (t & 1) else "s34")
        k.wait_vm(tokA[s])
        for m in range(4):
            for t in range(4):
                k.mfma(ACC(m, t), AFR(st, m), V(16 + t*4, 4), ACC(m, t) if s else 0)
        if s + NS < 16: issue(s + NS)
    k.stamp()
    k.valu("v_lshlrev_b32", V(8), 4, V(1))
    k.valu("v_lshl_add_u32", V(8), V(4), 14, V(8))
    for m in range(4):
        for t in range(4):
            k.dswrite("ds_write_b128", V(8), ACC(m, t), (m*4+t)*1024)
    k.wait_lg_all()
    k.barrier()
    k.valu("v_lshrrev_b32", V(9), 1, V(4))
    k.valu("v_and_b32", V(10), 1, V(4))
    k.valu("v_lshlrev_b32", V(8), 4, V(1))
    k.valu("v_lshl_add_u32", V(8), V(9), 12, V(8))
    k.valu("v_lshl_add_u32", V(8), V(10), 3, V(8))
    k.valu("v_add_u32", V(11), 65536, V(8))
    for t in range(4):
        for w in range(8):
            off = w*16384 + t*1024
            k.dsread("ds_read_b64", V(96 + (t*8 + w)*2, 2), V(8) if off < 65536 else V(11), off % 65536)
    k.wait_lg_all()
    for t in range(4):
        b = 96 + t*16
        for q in range(2):
            k.valu("v_add_f32", V(b+q), V(b+q), V(b+2+q))
            k.valu("v_add_f32", V(b+4+q), V(b+4+q), V(b+6+q))
            k.valu("v_add_f32", V(b+8+q), V(b+8+q), V(b+10+q))
            k.valu("v_add_f32", V(b+12+q), V(b+12+q), V(b+14+q))
        for q in range(2):
            k.valu("v_add_f32", V(b+q), V(b+q), V(b+4+q))
            k.valu("v_add_f32", V(b+8+q), V(b+8+q), V(b+12+q))
        for q in range(2):
            k.valu("v_add_f32", V(b+q), V(b+q), V(b+8+q))
    k.valu("v_lshlrev_b32", V(12), 4, V(9))
    k.valu("v_lshl_add_u32", V(12), V(3), 2, V(12))
    k.valu("v_lshl_add_u32", V(12), V(10), 1, V(12))
    k.valu("v_mul_u32_u24", V(12), 896, V(12))
    k.valu("v_lshl_add_u32", V(12), V(2), 3, V(12))
    e("s_mul_i32 s6, s4, 57344")
    e("s_add_u32 s6, s6, s7")
    for q in range(2):
        k.valu("v_cvt_pk_bf16_f32", V(16+q*2), V(96+q), V(112+q))
        k.valu("v_cvt_pk_bf16_f32", V(17+q*2), V(128+q), V(144+q))
        k.vstore("buffer_store_dwordx2", V(16+q*2, 2), V(12), SOUT, "s6", offset=q*896)
    k.wait_vm_all()
    k.stamp()
    if DBG:
        k.raw("v_readfirstlane_b32 s57, v4")
        k.raw("s_nop 4")
    k.dump("s57", 16)
    k.label("L_op_end")
    e("s_endpgm")
    return k

HEADER = """; Kernarg layout for this problem (64 bytes, ptrs only, base s[0:1]):
;   offset   0: d_in[0] x  shape=(16, 144, 448) dtype=bfloat16 strides=(129024, 896, 2) contiguous=True
;   offset   8: d_in[1] k_cache  shape=(16, 16, 512, 256) dtype=bfloat16 strides=(4194304, 262144, 512, 2) contiguous=True
;   offset  16: d_in[2] v_cache  shape=(16, 16, 512, 256) dtype=bfloat16 strides=(4194304, 262144, 512, 2) contiguous=True
;   offset  24: d_in[3] wq  shape=(448, 4096) dtype=bfloat16 strides=(8192, 2) contiguous=True
;   offset  32: d_in[4] wo  shape=(4096, 448) dtype=bfloat16 strides=(896, 2) contiguous=True
;   offset  40: d_out     shape=(16, 144, 448) dtype=bfloat16 (2 bytes/elem)
;   offset  48: d_debug   256 bytes
;   offset  56: d_ws      268435456 bytes workspace
; Generated by a Python generator script (hand-designed schedule).
; Launch 1: fused Q-projection + attention per (batch, head); writes O (bf16) to d_ws.
; Launch 2: output projection O @ Wo.
; @launch kernel=standalone__mha_block_cached__near_ridge_kernel grid=(256,1,1) block=(256,1,1) lds=%d
; @launch kernel=oproj_kernel grid=(256,1,1) block=(512,1,1) lds=131072
.amdgcn_target "amdgcn-amd-amdhsa--gfx950"
.text
""" % LDS1

def main():
    a = gen_attn(); o = gen_oproj()
    s = HEADER
    s += ".globl standalone__mha_block_cached__near_ridge_kernel\n.p2align 8\n.type standalone__mha_block_cached__near_ridge_kernel,@function\n"
    s += a.text()
    s += ".globl oproj_kernel\n.p2align 8\n.type oproj_kernel,@function\n"
    s += o.text()
    s += """.section .rodata,"a"
.p2align 6
.amdhsa_kernel standalone__mha_block_cached__near_ridge_kernel
  .amdhsa_next_free_vgpr 512
  .amdhsa_next_free_sgpr 96
  .amdhsa_accum_offset 256
  .amdhsa_group_segment_fixed_size 0
  .amdhsa_kernarg_size 64
  .amdhsa_user_sgpr_count 2
  .amdhsa_user_sgpr_kernarg_segment_ptr 1
  .amdhsa_system_sgpr_workgroup_id_x 1
.end_amdhsa_kernel
.p2align 6
.amdhsa_kernel oproj_kernel
  .amdhsa_next_free_vgpr 256
  .amdhsa_next_free_sgpr 96
  .amdhsa_accum_offset 256
  .amdhsa_group_segment_fixed_size 0
  .amdhsa_kernarg_size 64
  .amdhsa_user_sgpr_count 2
  .amdhsa_user_sgpr_kernarg_segment_ptr 1
  .amdhsa_system_sgpr_workgroup_id_x 1
.end_amdhsa_kernel
"""
    out = sys.argv[1] if len(sys.argv) > 1 else "standalone__mha_block_cached__near_ridge.s"
    open(out, "w").write(s)
    print("attn counts", a.count, "nops", a.nops)
    print("oproj counts", o.count, "nops", o.nops)

main()
```

```python
import sys, math
sys.path.insert(0, 'gen')
from asmlib import *

C1 = math.log2(math.e) / 16.0
import os
DBG = int(os.environ.get('DBG','0'))
DBGWG = int(os.environ.get('DBGWG','37'))
KRATE = int(os.environ.get('KRATE','2'))
K0 = int(os.environ.get('K0','8'))
VEXP = int(os.environ.get('VEXP','7'))
NOWQ = int(os.environ.get('NOWQ','0'))
NOXR = int(os.environ.get('NOXR','0'))
NOPERM = int(os.environ.get('NOPERM','0'))
KFLAGS = os.environ.get('KFLAGS',' nt')
OSTF = os.environ.get('OSTF','')
OLDF = os.environ.get('OLDF','')
WOF = os.environ.get('WOF','')
WQF = os.environ.get('WQF','')
XF = os.environ.get('XF','')
LDS_MX = 147456
LDS_SUM = LDS_MX + 2304
LDS_OST = LDS_SUM + 2304
LDS1 = LDS_OST + 8192

def add_stamp(k, sb=64):
    k.nst = 0
    def stamp():
        if not DBG: return
        k.raw("s_memtime s[62:63]")
        k.raw("s_waitcnt lgkmcnt(0)")
        k.raw(f"s_mov_b32 s{sb+k.nst}, s62")
        k.nst += 1
    k.stamp = stamp
    def dump(waveS, base):
        if not DBG: return
        k.raw(f"s_cmp_lg_u32 s2, {DBGWG}")
        k.raw(f"s_cbranch_scc1 L_nodump{base}")
        k.raw("s_load_dwordx2 s[60:61], s[0:1], 48")
        k.raw("s_waitcnt lgkmcnt(0)")
        k.raw("s_mov_b32 s62, 256")
        k.raw("s_mov_b32 s63, 0x20000")
        k.raw(f"v_mov_b32 v1, 0")
        k.raw(f"s_cmp_lg_u32 {waveS}, 0")
        k.raw(f"s_cbranch_scc1 L_nodump{base}")
        for i in range(k.nst):
            k.raw(f"s_sub_u32 s58, s{sb+i}, s{sb}")
            k.raw(f"v_mov_b32 v2, s58")
            k.raw(f"buffer_store_dword v2, v1, s[60:63], 0 offen offset:{(base+i)*4}")
        k.raw("s_waitcnt vmcnt(0)")
        k.label(f"L_nodump{base}")
    k.dump = dump

def gen_attn():
    k = Asm()
    add_stamp(k)
    e = k.raw
    k.label("standalone__mha_block_cached__near_ridge_kernel")
    e("s_cmp_ge_u32 s2, 256")
    e("s_cbranch_scc1 L_attn_end")
    k.stamp()
    e("s_load_dwordx8 s[36:43], s[0:1], 0")
    e("s_load_dwordx2 s[44:45], s[0:1], 56")
    e("s_load_dwordx2 s[88:89], s[0:1], 32")
    e("v_and_b32 v1, 63, v0")
    e("v_and_b32 v2, 15, v0")
    e("v_lshrrev_b32 v3, 4, v1")
    e("v_lshrrev_b32 v27, 6, v0")
    e("s_lshr_b32 s6, s2, 3")
    e("s_and_b32 s7, s2, 7")
    e("s_and_b32 s4, s7, 3")
    e("s_lshl_b32 s4, s4, 2")
    e("s_and_b32 s3, s6, 3")
    e("s_add_u32 s4, s4, s3")
    e("s_lshr_b32 s3, s7, 2")
    e("s_lshl_b32 s3, s3, 3")
    e("s_lshr_b32 s6, s6, 2")
    e("s_add_u32 s3, s3, s6")
    e("s_lshl_b32 s7, s3, 4")
    e("s_add_u32 s7, s7, s4")
    e("v_readfirstlane_b32 s5, v27")
    e("s_mov_b32 s33, " + f32hex(C1))
    e("s_mov_b32 s34, 0x05040100")
    e("s_mov_b32 s35, 0x07060302")
    e("v_lshrrev_b32 v28, 1, v3")
    e("v_xor_b32 v29, v3, v28")
    e("v_and_b32 v29, 1, v29")
    e("v_lshl_or_b32 v29, v29, 1, v28")
    e("v_and_b32 v30, 3, v1")
    e("v_xor_b32 v29, v29, v30")
    e("v_lshrrev_b32 v30, 2, v1")
    e("v_mul_u32_u24 v4, 896, v30")
    e("v_lshl_add_u32 v4, v29, 4, v4")
    e("v_lshl_add_u32 v4, v27, 6, v4")
    e("v_lshrrev_b32 v30, 2, v2")
    e("v_lshrrev_b32 v28, 1, v30")
    e("v_xor_b32 v29, v30, v28")
    e("v_and_b32 v29, 1, v29")
    e("v_lshl_or_b32 v29, v29, 1, v28")
    e("v_xor_b32 v29, v29, v3")
    e("v_lshlrev_b32 v5, 6, v2")
    e("v_lshl_add_u32 v5, v29, 4, v5")
    e("v_add_u32 v6, 0x10000, v5")
    e("v_lshlrev_b32 v7, 3, v2")
    e("v_lshl_add_u32 v7, v3, 16, v7")
    e("v_lshrrev_b32 v28, 1, v3")
    e("v_xor_b32 v29, v3, v28")
    e("v_and_b32 v29, 1, v29")
    e("v_lshl_or_b32 v29, v29, 1, v28")
    e("v_and_b32 v30, 3, v1")
    e("v_xor_b32 v29, v29, v30")
    e("v_lshrrev_b32 v30, 2, v1")
    e("v_lshlrev_b32 v8, 9, v30")
    e("v_lshl_add_u32 v8, v29, 4, v8")
    e("v_lshlrev_b32 v0, 4, v1")
    e("v_lshl_add_u32 v0, v27, 12, v0")
    e(f"v_add_u32 v0, {73728}, v0")
    e("v_lshlrev_b32 v9, 3, v2")
    e("v_lshl_add_u32 v9, v3, 12, v9")
    e("v_xor_b32 v28, v3, v2")
    e("v_lshlrev_b32 v28, 4, v28")
    e("v_lshl_add_u32 v18, v2, 9, v28")
    e("v_lshl_add_u32 v23, v2, 10, v28")
    e("v_lshrrev_b32 v28, 1, v3")
    e("v_xor_b32 v28, v28, v2")
    e("v_lshlrev_b32 v28, 4, v28")
    e("v_lshl_add_u32 v21, v2, 10, v28")
    e("v_lshl_add_u32 v21, v27, 8, v21")
    e("v_and_b32 v28, 1, v3")
    e("v_lshl_add_u32 v21, v28, 3, v21")
    e("s_lshl_b32 s28, s5, 10")
    e("s_lshl_b32 s29, s4, 9")
    e("s_lshl_b32 s6, s5, 7")
    e("s_add_u32 s29, s29, s6")
    e("s_lshl_b32 s30, s5, 16")
    e("s_mov_b32 s31, s6")
    e("s_mul_i32 s32, s3, 1179648")
    e("s_lshl_b32 s6, s4, 13")
    e("s_add_u32 s32, s32, s6")
    e("s_lshl_b32 s6, s5, 11")
    e("s_add_u32 s32, s32, s6")
    for t in range(8):
        e(f"s_add_u32 s{48+t}, s30, {t*8192}")
    e("s_waitcnt lgkmcnt(0)")
    e("s_mul_i32 s6, s3, 129024")
    e("s_add_u32 s8, s36, s6")
    e("s_addc_u32 s9, s37, 0")
    e("s_mov_b32 s10, 129024")
    e("s_mov_b32 s11, 0x20000")
    e("s_mov_b32 s12, s42")
    e("s_mov_b32 s13, s43")
    e("s_mov_b32 s14, 3670016")
    e("s_mov_b32 s15, 0x20000")
    e("s_lshl_b32 s6, s7, 18")
    e("s_add_u32 s16, s38, s6")
    e("s_addc_u32 s17, s39, 0")
    e("s_mov_b32 s18, 262144")
    e("s_mov_b32 s19, 0x20000")
    e("s_add_u32 s20, s40, s6")
    e("s_addc_u32 s21, s41, 0")
    e("s_mov_b32 s22, 262144")
    e("s_mov_b32 s23, 0x20000")
    e("s_mov_b32 s24, s44")
    e("s_mov_b32 s25, s45")
    e("s_mov_b32 s26, 18874368")
    e("s_mov_b32 s27, 0x20000")
    e("s_mov_b32 s90, 3670016")
    e("s_mov_b32 s91, 0x20000")
    e("s_mul_i32 s92, s2, 14336")
    e("s_lshl_b32 s6, s5, 12")
    e("s_add_u32 s92, s92, s6")
    e("v_lshlrev_b32 v31, 4, v1")
    SX, SWQ, SK, SV, SO = "s[8:11]", "s[12:15]", "s[16:19]", "s[20:23]", "s[24:27]"

    def dma(sp, m):
        e(f"s_add_u32 m0, s28, {m*14336 + sp*4096}")
        e(f"s_mov_b32 s46, {m*14336 + sp*256}")
        return k.vdma(V(4), SX, "s46", flags=XF)
    e("s_cmp_ge_u32 s5, 2")
    e("s_cbranch_scc1 L_skipdma")
    for m in range(9):
        dma(3, m)
    k.label("L_skipdma")

    NW = 6
    WRAW = lambda st, j: V(32 + st*16 + j*2, 2)
    WFR = lambda st, t: V(128 + st*16 + t*4, 4)
    FR = lambda m: V(176 + m*4, 4)
    ACCQ = lambda m, t: A((m*4+t)*4, 4)
    VB_A = [V(160 + 4*i, 4) for i in range(4)]
    VB_B = [V(212 + 4*i, 4) for i in range(8)]
    AR = [A(144 + 4*i, 4) for i in range(28)]
    init_slots = VB_A + VB_B + AR
    stmp = [46, 47, 58, 59]
    sidx = [0]
    def stemp():
        sidx[0] = (sidx[0] + 1) % len(stmp)
        return stmp[sidx[0]]

    wq_tok = {}
    def wq_loads(s):
        fl = []
        for j in range(8):
            def f(j=j):
                st = stemp()
                e(f"s_add_u32 s{st}, s29, {(32*s+j)*8192}")
                wq_tok[s] = k.vload("buffer_load_dwordx2", WRAW(s % NW, j), V(7), SWQ, f"s{st}", flags=WQF)
            fl.append(f)
        return fl
    def issue_wq(s):
        for f in wq_loads(s): f()
    k_tok = {}
    k_slot = {}
    k_next = [0]
    korder = [(2*sp + ee, t) for sp in range(4) for t in range(4, 8) for ee in range(2)] + \
             [(2*sp + ee, t) for sp in range(4) for t in range(0, 4) for ee in range(2)]
    def issue_k(slot):
        s_, t = korder[k_next[0]]; k_next[0] += 1
        i = s_*8 + t
        k_slot[i] = slot
        k_tok[i] = k.vload("buffer_load_dwordx4", slot, V(8), SK, f"s{48+t}", offset=s_*64, flags=KFLAGS)
    kp_tok = {}
    ksc = [0]
    def kperm(i):
        k.wait_vm(k_tok[i])
        sl = k_slot[i]
        off = (ksc[0] % 4) * 1024; ksc[0] += 1
        k.dswrite("ds_write_b128", V(0), sl, off)
        kp_tok[i] = k.dsread("ds_read_b128", sl, V(5), off)
    v_tok = {}
    v_reg = {}
    def v_loads(u, regs):
        v_reg[u] = regs
        fl = []
        for j in range(8):
            def f(j=j):
                st = stemp()
                e(f"s_add_u32 s{st}, s31, {u*16384}")
                v_tok[u] = k.vload("buffer_load_dwordx2", regs[j], V(9), SV, f"s{st}", offset=j*512, flags=KFLAGS)
            fl.append(f)
        return fl
    def issue_v(u, regs):
        for f in v_loads(u, regs): f()

    def perm_fill(raws, out):
        fl = []
        for t in range(4):
            for i in range(4):
                hi = raws[2*i+1]; lo = raws[2*i]
                def f(t=t, i=i, hi=hi, lo=lo):
                    o = out(t)
                    k.valu("v_perm_b32", V(o[1]+i), V(hi[1] + (t >> 1)), V(lo[1] + (t >> 1)), "s35" if (t & 1) else "s34")
                fl.append(f)
        return fl

    xtok = {}
    ring_next = 0
    for m in range(9): xtok[0] = dma(0, m)
    issue_wq(0); issue_wq(1); issue_wq(2)
    for _ in range(K0):
        issue_k(init_slots[ring_next]); ring_next += 1
    k.wait_vm(xtok[0])
    k.barrier()
    k.stamp()

    def xread(m, s):
        off = (m*14 + s) * 1024
        if off < 65536: return k.dsread("ds_read_b128", FR(m), V(5), off)
        return k.dsread("ds_read_b128", FR(m), V(6), off - 65536)
    fr_tok = {}
    for m in range(9): fr_tok[m] = xread(m, 0)
    k.wait_vm(wq_tok[0])
    for f in perm_fill([WRAW(0, j) for j in range(8)], lambda t: WFR(0, t)): f()
    mem = []
    def dma_f(sp, m):
        def f(): xtok[sp] = dma(sp, m)
        return f
    def k_f():
        nonlocal ring_next
        if ring_next < len(init_slots):
            issue_k(init_slots[ring_next]); ring_next += 1
    def wo_f(i):
        return lambda: k.vload("buffer_load_dwordx4", V(244, 4), V(31), "s[88:91]", "s92", offset=i*1024)
    mem += [dma_f(1, m) for m in range(9)] + wq_loads(3) + wq_loads(4) + [dma_f(2, m) for m in range(9)] + [wo_f(i) for i in range(4)]
    for s in range(14):
        if s in (3, 7):
            k.wait_vm(xtok[(s+1)//4])
            k.barrier()
        if s + 5 < 14: mem += wq_loads(s+5)
        mem += [k_f] * KRATE
        fill = []
        if s + 1 < 14:
            fill.append(lambda s=s: k.wait_vm(wq_tok[s+1]))
            fill += perm_fill([WRAW((s+1) % NW, j) for j in range(8)], lambda t, s=s: WFR((s+1) % 2, t))
        n = 0
        for m in range(9):
            k.wait_lg(fr_tok[m])
            for t in range(4):
                k.mfma(ACCQ(m, t), FR(m), WFR(s % 2, t), ACCQ(m, t) if s else 0)
                if n % 2 == 0 and mem: mem.pop(0)()
                if n >= 12 and fill: fill.pop(0)()
                n += 1
            if s + 1 < 14: fr_tok[m] = xread(m, s+1)
        while fill: fill.pop(0)()
    while mem: mem.pop(0)()
    k.stamp()
    while ring_next < len(init_slots):
        issue_k(init_slots[ring_next]); ring_next += 1
    k.stamp()
    k.barrier()
    k.valu("v_and_b32", V(28), 1, V(27))
    k.valu("v_lshlrev_b32", V(28), 3, V(28))
    k.valu("v_lshrrev_b32", V(29), 1, V(2))
    k.valu("v_add_u32", V(28), V(28), V(29))
    k.valu("v_lshrrev_b32", V(29), 1, V(27))
    k.valu("v_lshlrev_b32", V(29), 8, V(29))
    k.valu("v_and_b32", V(30), 1, V(2))
    k.valu("v_lshl_add_u32", V(29), V(30), 3, V(29))
    for r in range(4):
        k.valu("v_lshl_add_u32", V(30), V(3), 2, r)
        k.valu("v_xor_b32", V(31), V(28), V(30))
        k.valu("v_lshl_add_u32", V(10+r), V(31), 4, V(29))
        k.valu("v_lshl_add_u32", V(10+r), V(30), 9, V(10+r))
        k.valu("v_add_u32", V(14+r), 32768, V(10+r))
    tb = 244
    for m in range(9):
        for r in range(4):
            T = tb + ((m*4 + r) % 2) * 6
            for t in range(4):
                k.valu("v_accvgpr_read_b32", V(T+t), A((m*4+t)*4 + r))
            k.valu("v_cvt_pk_bf16_f32", V(T+4), V(T), V(T+1))
            k.valu("v_cvt_pk_bf16_f32", V(T+5), V(T+2), V(T+3))
            if m < 4: k.dswrite("ds_write_b64", V(10+r), V(T+4, 2), m*8192)
            else: k.dswrite("ds_write_b64", V(14+r), V(T+4, 2), (m-4)*8192)
    k.wait_lg_all()
    k.barrier()
    k.stamp()

    def ACCS(t, m):
        if t < 4: return V(32 + (m*4 + t)*4, 4)
        return A((m*4 + (t-4))*4, 4)
    def qaddr(s):
        k.valu("v_xor_b32", V(19), (s & 3) << 6, V(18))
        k.valu("v_add_u32", V(20), 65536, V(19))
    def qread(m, s):
        off = m*8192 + (s >> 2)*256
        if off < 65536: return k.dsread("ds_read_b128", FR(m), V(19), off)
        return k.dsread("ds_read_b128", FR(m), V(20), off - 65536)
    k.valu("v_lshl_add_u32", V(5), V(27), 12, V(5))
    k.valu("v_add_u32", V(5), 73728, V(5))
    seq = [(p, s_) for p in (0, 1) for s_ in range(8)]
    tiles = lambda p: range(4, 8) if p == 0 else range(0, 4)
    qaddr(0)
    for t in tiles(0): kperm(t)
    for m in range(9): fr_tok[m] = qread(m, 0)
    v_next = 0
    vfree = []
    mem = []
    kq = k_next[0]
    for idx, (p, s) in enumerate(seq):
        nxt = seq[idx+1] if idx + 1 < len(seq) else None
        if nxt: qaddr(nxt[1])
        n = 0
        for m in range(9):
            k.wait_lg(fr_tok[m])
            for t in tiles(p):
                i = s*8 + t
                k.wait_lg(kp_tok[i])
                k.mfma(ACCS(t, m), k_slot[i], FR(m), ACCS(t, m) if s else 0)
                if n % 3 == 0 and mem: mem.pop(0)()
                n += 1
            if nxt:
                fr_tok[m] = qread(m, nxt[1])
                if 4 <= m < 8: kperm(nxt[1]*8 + list(tiles(nxt[0]))[m-4])
        for t in tiles(p):
            sl = k_slot[s*8 + t]
            if sl in VB_A: continue
            if kq < 64:
                mem.append(lambda sl=sl: issue_k(sl)); kq += 1
            elif sl in AR: vfree.append(sl)
        while len(vfree) >= 4 and v_next < 7:
            sls = vfree[:4]; vfree = vfree[4:]
            regs = []
            for sl in sls:
                regs += [A(sl[1], 2), A(sl[1] + 2, 2)]
            mem += v_loads(v_next, regs); v_next += 1
    while mem: mem.pop(0)()
    assert v_next == 7, v_next

    k.stamp()
    NEGM = lambda m: V(212 + m)
    PSUM = lambda m: V(221 + m)
    k.valu("v_lshlrev_b32", V(28), 4, V(2))
    k.valu("v_lshl_add_u32", V(28), V(27), 2, V(28))
    k.valu("v_add_u32", V(28), LDS_MX, V(28))
    k.valu("v_lshlrev_b32", V(29), 4, V(2))
    k.valu("v_add_u32", V(29), LDS_MX, V(29))
    for m in range(9):
        mx = NEGM(m)
        vals = []
        for t in range(4):
            b = ACCS(t, m)[1]
            vals += [V(b+r) for r in range(4)]
        k.valu("v_max3_f32", mx, vals[0], vals[1], vals[2])
        k.valu("v_max3_f32", mx, vals[3], vals[4], mx)
        for i in range(5, 15, 2):
            k.valu("v_max3_f32", mx, vals[i], vals[i+1], mx)
        k.valu("v_max_f32", mx, vals[15], mx)
        for t in range(4, 8):
            b = ACCS(t, m)[1]
            T = 176 + (t-4)*4
            for r in range(4):
                k.valu("v_accvgpr_read_b32", V(T+r), A(b+r))
        for t in range(4, 8):
            T = 176 + (t-4)*4
            k.valu("v_max3_f32", mx, V(T), V(T+1), mx)
            k.valu("v_max3_f32", mx, V(T+2), V(T+3), mx)
        k.valu("v_mov_b32", V(230), mx)
        k.valu("v_permlane32_swap_b32", V(230), mx, permlane=True, extra_w=(mx,))
        k.valu("v_max_f32", mx, V(230), mx)
        k.valu("v_mov_b32", V(230), mx)
        k.valu("v_permlane16_swap_b32", V(230), mx, permlane=True, extra_w=(mx,))
        k.valu("v_max_f32", mx, V(230), mx)
        k.dswrite("ds_write_b32", V(28), mx, m*256)
    k.wait_lg_all()
    k.barrier()
    k.stamp()
    toks = []
    for m in range(9):
        toks.append(k.dsread("ds_read_b128", V(176 + m*4, 4), V(29), m*256))
    k.valu("v_mov_b32", V(231), "s33")
    for m in range(9):
        k.wait_lg(toks[m])
        T = 176 + m*4
        k.valu("v_max3_f32", NEGM(m), V(T), V(T+1), V(T+2))
        k.valu("v_max_f32", NEGM(m), V(T+3), NEGM(m))
        k.valu("v_mul_f32", NEGM(m), V(231), NEGM(m))
        k.valu("v_sub_f32", NEGM(m), 0, NEGM(m))
    tsel = 0
    for m in range(9):
        if m == 0: k.valu("v_mov_b32", V(22), V(21))
        else: k.valu("v_add_u32", V(22), m*16384, V(21))
        first = True
        for t in range(8):
            if t < 4:
                b = ACCS(t, m)[1]
                S = [V(b+r) for r in range(4)]
            else:
                T = 176 + (tsel % 4)*4; tsel += 1
                ab = ACCS(t, m)[1]
                for r in range(4):
                    k.valu("v_accvgpr_read_b32", V(T+r), A(ab+r))
                S = [V(T+r) for r in range(4)]
            for r in range(4):
                k.valu("v_fma_f32", S[r], S[r], "s33", NEGM(m))
            for r in range(4):
                k.valu("v_exp_f32", S[r], S[r], trans=True)
            P = 232 + (t % 4)*2
            AD = 240 + (t % 4)
            k.valu("v_xor_b32", V(AD), t << 5, V(22))
            k.valu("v_cvt_pk_bf16_f32", V(P), S[0], S[1])
            k.valu("v_cvt_pk_bf16_f32", V(P+1), S[2], S[3])
            if first:
                k.valu("v_add_f32", PSUM(m), S[0], S[1]); first = False
            else:
                k.valu("v_add_f32", PSUM(m), S[0], PSUM(m))
                k.valu("v_add_f32", PSUM(m), S[1], PSUM(m))
            k.valu("v_add_f32", PSUM(m), S[2], PSUM(m))
            k.valu("v_add_f32", PSUM(m), S[3], PSUM(m))
            k.dswrite("ds_write_b64", V(AD), V(P, 2))
        if m < VEXP:
            k.wait_vm(v_tok[m])
            issue_v(7 + m, [V(32 + m*16 + 2*j, 2) for j in range(8)])
    k.valu("v_mul_u32_u24", V(28), 576, V(27))
    k.valu("v_lshl_add_u32", V(28), V(2), 2, V(28))
    k.valu("v_add_u32", V(28), LDS_SUM, V(28))
    for m in range(9):
        ps = PSUM(m)
        k.valu("v_mov_b32", V(230), ps)
        k.valu("v_permlane32_swap_b32", V(230), ps, permlane=True, extra_w=(ps,))
        k.valu("v_add_f32", ps, V(230), ps)
        k.valu("v_mov_b32", V(230), ps)
        k.valu("v_permlane16_swap_b32", V(230), ps, permlane=True, extra_w=(ps,))
        k.valu("v_add_f32", ps, V(230), ps)
        k.dswrite("ds_write_b32", V(28), ps, m*64)
    k.wait_lg_all()
    k.barrier()
    k.stamp()

    ACCO = lambda m, t: A((m*4+t)*4, 4)
    VFR = lambda st, t: V(212 + st*16 + t*4, 4)
    def paddr(u):
        k.valu("v_xor_b32", V(24), (u & 3) << 6, V(23))
        k.valu("v_add_u32", V(25), 65536, V(24))
        k.valu("v_add_u32", V(26), 131072, V(24))
    def pread(m, u):
        off = m*16384 + (u >> 2)*256
        return k.dsread("ds_read_b128", FR(m), V(24 + off // 65536), off % 65536)
    def vprep(u):
        fl = [lambda: k.wait_vm(v_tok[u])]
        regs = v_reg[u]
        if regs[0][0] == 'a':
            tmp = [244, 246, 248, 250, 252, 254, 10, 12]
            for j in range(8):
                for q in range(2):
                    fl.append(lambda j=j, q=q: k.valu("v_accvgpr_read_b32", V(tmp[j]+q), A(regs[j][1]+q)))
            raws = [V(tmp[j], 2) for j in range(8)]
        else:
            raws = regs
        fl += perm_fill(raws, lambda t: VFR(u % 2, t))
        return fl
    paddr(0)
    for m in range(9): fr_tok[m] = pread(m, 0)
    for f in vprep(0): f()
    for u in range(16):
        fill = []
        mem = []
        if u + 1 < 16:
            paddr(u+1)
            fill = vprep(u+1)
        if 7 + VEXP + u < 16:
            mem = v_loads(7 + VEXP + u, [V(32 + (VEXP+u)*16 + 2*j, 2) for j in range(8)])
        n = 0
        for m in range(9):
            k.wait_lg(fr_tok[m])
            for t in range(4):
                k.mfma(ACCO(m, t), FR(m), VFR(u % 2, t), ACCO(m, t) if u else 0)
                if fill: fill.pop(0)()
                if n % 4 == 3 and mem: mem.pop(0)()
                n += 1
            if u + 1 < 16: fr_tok[m] = pread(m, u+1)
        while fill: fill.pop(0)()
        while mem: mem.pop(0)()

    k.stamp()
    k.valu("v_lshlrev_b32", V(28), 4, V(3))
    k.valu("v_add_u32", V(28), LDS_SUM, V(28))
    for m in range(9):
        for w in range(4):
            k.dsread("ds_read_b128", V(32 + (m*4+w)*4, 4), V(28), w*576 + m*64)
    k.valu("v_lshrrev_b32", V(29), 1, V(2))
    k.valu("v_lshlrev_b32", V(30), 2, V(3))
    k.valu("v_xor_b32", V(30), V(30), V(29))
    k.valu("v_lshlrev_b32", V(30), 4, V(30))
    k.valu("v_lshl_add_u32", V(30), V(29), 8, V(30))
    k.valu("v_and_b32", V(29), 1, V(2))
    k.valu("v_lshl_add_u32", V(30), V(29), 3, V(30))
    k.valu("v_lshl_add_u32", V(30), V(27), 11, V(30))
    k.valu("v_add_u32", V(10), LDS_OST, V(30))
    for r in range(1, 4):
        k.valu("v_xor_b32", V(10+r), r << 4, V(10))
    k.valu("v_xor_b32", V(30), V(2), V(3))
    k.valu("v_lshlrev_b32", V(30), 4, V(30))
    k.valu("v_lshl_add_u32", V(30), V(3), 8, V(30))
    k.valu("v_lshl_add_u32", V(30), V(27), 11, V(30))
    k.valu("v_add_u32", V(14), LDS_OST, V(30))
    k.valu("v_xor_b32", V(15), 64, V(14))
    k.valu("v_lshlrev_b32", V(16), 4, V(1))
    k.wait_lg_all()
    for m in range(9):
        b = 32 + m*16
        for r in range(4):
            k.valu("v_add_f32", V(b+r), V(b+r), V(b+4+r))
            k.valu("v_add_f32", V(b+8+r), V(b+8+r), V(b+12+r))
        for r in range(4):
            k.valu("v_add_f32", V(b+r), V(b+r), V(b+8+r))
        for r in range(4):
            k.valu("v_rcp_f32", V(b+r), V(b+r), trans=True)
    pend = None
    for m in range(9):
        b = 32 + m*16
        for r in range(4):
            T = 176 + ((m*4 + r) % 4) * 6
            for t in range(4):
                k.valu("v_accvgpr_read_b32", V(T+t), A((m*4+t)*4 + r))
            for t in range(4):
                k.valu("v_mul_f32", V(T+t), V(T+t), V(b+r))
            k.valu("v_cvt_pk_bf16_f32", V(T+4), V(T), V(T+1))
            k.valu("v_cvt_pk_bf16_f32", V(T+5), V(T+2), V(T+3))
            k.dswrite("ds_write_b64", V(10+r), V(T+4, 2))
        RB = 212 + (m % 2)*8
        t0 = k.dsread("ds_read_b128", V(RB, 4), V(14))
        t1 = k.dsread("ds_read_b128", V(RB+4, 4), V(15), 1024)
        if pend is not None:
            pm, pRB, pt1 = pend
            k.wait_lg(pt1)
            st = stemp()
            e(f"s_add_u32 s{st}, s32, {pm*131072}")
            k.vstore("buffer_store_dwordx4", V(pRB, 4), V(16), SO, f"s{st}", flags=OSTF)
            k.vstore("buffer_store_dwordx4", V(pRB+4, 4), V(16), SO, f"s{st}", offset=1024, flags=OSTF)
        pend = (m, RB, t1)
    pm, pRB, pt1 = pend
    k.wait_lg(pt1)
    st = stemp()
    e(f"s_add_u32 s{st}, s32, {pm*131072}")
    k.vstore("buffer_store_dwordx4", V(pRB, 4), V(16), SO, f"s{st}", flags=OSTF)
    k.vstore("buffer_store_dwordx4", V(pRB+4, 4), V(16), SO, f"s{st}", offset=1024, flags=OSTF)
    k.stamp()
    k.wait_vm_all()
    k.stamp()
    k.dump("s5", 0)
    k.label("L_attn_end")
    e("s_endpgm")
    return k

def gen_oproj():
    k = Asm()
    add_stamp(k, 84)
    e = k.raw
    k.label("oproj_kernel")
    e("s_cmp_ge_u32 s2, 256")
    e("s_cbranch_scc1 L_op_end")
    e("s_and_b32 s3, s2, 7")
    e("s_lshl_b32 s3, s3, 5")
    e("s_lshr_b32 s4, s2, 3")
    e("s_add_u32 s3, s3, s4")
    e("s_cmp_ge_u32 s3, 252")
    e("s_cbranch_scc1 L_op_end")
    k.stamp()
    e("s_load_dwordx4 s[36:39], s[0:1], 32")
    e("s_load_dwordx2 s[40:41], s[0:1], 56")
    e("s_mul_i32 s4, s3, 9363")
    e("s_lshr_b32 s4, s4, 16")
    e("s_mul_i32 s5, s4, 7")
    e("s_sub_u32 s5, s3, s5")
    e("v_and_b32 v1, 63, v0")
    e("v_and_b32 v2, 15, v0")
    e("v_lshrrev_b32 v3, 4, v1")
    e("v_lshrrev_b32 v4, 6, v0")
    e("s_mov_b32 s34, 0x05040100")
    e("s_mov_b32 s35, 0x07060302")
    e("v_lshlrev_b32 v5, 4, v1")
    e("v_lshl_add_u32 v5, v4, 14, v5")
    e("v_mul_u32_u24 v6, 7168, v3")
    e("v_lshl_add_u32 v6, v2, 3, v6")
    e("s_mov_b32 s6, 458752")
    e("v_mul_lo_u32 v7, s6, v4")
    e("v_add_u32 v6, v6, v7")
    e("v_add_u32 v7, 3584, v6")
    e("s_lshl_b32 s6, s4, 19")
    for m in range(4):
        for q in range(4):
            e(f"s_add_u32 s{64+m*4+q}, s6, {m*131072 + q*4096}")
    e("s_lshl_b32 s7, s5, 7")
    e("s_waitcnt lgkmcnt(0)")
    e("s_mov_b32 s8, s40"); e("s_mov_b32 s9, s41"); e("s_mov_b32 s10, 18874368"); e("s_mov_b32 s11, 0x20000")
    e("s_mov_b32 s12, s36"); e("s_mov_b32 s13, s37"); e("s_mov_b32 s14, 3670016"); e("s_mov_b32 s15, 0x20000")
    e("s_mov_b32 s16, s38"); e("s_mov_b32 s17, s39"); e("s_mov_b32 s18, 2064384"); e("s_mov_b32 s19, 0x20000")
    SA, SB, SOUT = "s[8:11]", "s[12:15]", "s[16:19]"
    NS = 5
    AFR = lambda st, m: V(96 + st*32 + m*4, 4)
    BRAW = lambda st, j: V(96 + st*32 + 16 + j*2, 2)
    BFR = lambda st, t: V(16 + st*8*0 + t*4, 4) if False else V(16 + (st % 1)*16 + t*4, 4)
    ACC = lambda m, t: V(32 + (m*4+t)*4, 4)
    tokA = {}; tokB = {}
    sidx = [0]
    def stemp():
        sidx[0] = (sidx[0] + 1) % 4
        return 52 + sidx[0]
    def issue(s):
        st = s % NS
        sb = stemp()
        e(f"s_add_u32 s{sb}, s7, {32*s*896}")
        for j in range(8):
            if j < 4: tokB[s] = k.vload("buffer_load_dwordx2", BRAW(st, j), V(6), SB, f"s{sb}", offset=j*896, flags=WOF)
            else: tokB[s] = k.vload("buffer_load_dwordx2", BRAW(st, j), V(7), SB, f"s{sb}", offset=(j-4)*896, flags=WOF)
        for m in range(4):
            tokA[s] = k.vload("buffer_load_dwordx4", AFR(st, m), V(5), SA, f"s{64+m*4+(s>>2)}", offset=(s&3)*1024, flags=OLDF)
    for s in range(NS): issue(s)
    k.stamp()
    for s in range(16):
        st = s % NS
        k.wait_vm(tokB[s])
        for t in range(4):
            for i in range(4):
                hi = BRAW(st, 2*i+1); lo = BRAW(st, 2*i)
                k.valu("v_perm_b32", V(16 + t*4 + i), V(hi[1] + (t >> 1)), V(lo[1] + (t >> 1)), "s35" if (t & 1) else "s34")
        k.wait_vm(tokA[s])
        for m in range(4):
            for t in range(4):
                k.mfma(ACC(m, t), AFR(st, m), V(16 + t*4, 4), ACC(m, t) if s else 0)
        if s + NS < 16: issue(s + NS)
    k.stamp()
    k.valu("v_lshlrev_b32", V(8), 4, V(1))
    k.valu("v_lshl_add_u32", V(8), V(4), 14, V(8))
    for m in range(4):
        for t in range(4):
            k.dswrite("ds_write_b128", V(8), ACC(m, t), (m*4+t)*1024)
    k.wait_lg_all()
    k.barrier()
    k.valu("v_lshrrev_b32", V(9), 1, V(4))
    k.valu("v_and_b32", V(10), 1, V(4))
    k.valu("v_lshlrev_b32", V(8), 4, V(1))
    k.valu("v_lshl_add_u32", V(8), V(9), 12, V(8))
    k.valu("v_lshl_add_u32", V(8), V(10), 3, V(8))
    k.valu("v_add_u32", V(11), 65536, V(8))
    for t in range(4):
        for w in range(8):
            off = w*16384 + t*1024
            k.dsread("ds_read_b64", V(96 + (t*8 + w)*2, 2), V(8) if off < 65536 else V(11), off % 65536)
    k.wait_lg_all()
    for t in range(4):
        b = 96 + t*16
        for q in range(2):
            k.valu("v_add_f32", V(b+q), V(b+q), V(b+2+q))
            k.valu("v_add_f32", V(b+4+q), V(b+4+q), V(b+6+q))
            k.valu("v_add_f32", V(b+8+q), V(b+8+q), V(b+10+q))
            k.valu("v_add_f32", V(b+12+q), V(b+12+q), V(b+14+q))
        for q in range(2):
            k.valu("v_add_f32", V(b+q), V(b+q), V(b+4+q))
            k.valu("v_add_f32", V(b+8+q), V(b+8+q), V(b+12+q))
        for q in range(2):
            k.valu("v_add_f32", V(b+q), V(b+q), V(b+8+q))
    k.valu("v_lshlrev_b32", V(12), 4, V(9))
    k.valu("v_lshl_add_u32", V(12), V(3), 2, V(12))
    k.valu("v_lshl_add_u32", V(12), V(10), 1, V(12))
    k.valu("v_mul_u32_u24", V(12), 896, V(12))
    k.valu("v_lshl_add_u32", V(12), V(2), 3, V(12))
    e("s_mul_i32 s6, s4, 57344")
    e("s_add_u32 s6, s6, s7")
    for q in range(2):
        k.valu("v_cvt_pk_bf16_f32", V(16+q*2), V(96+q), V(112+q))
        k.valu("v_cvt_pk_bf16_f32", V(17+q*2), V(128+q), V(144+q))
        k.vstore("buffer_store_dwordx2", V(16+q*2, 2), V(12), SOUT, "s6", offset=q*896)
    k.wait_vm_all()
    k.stamp()
    if DBG:
        k.raw("v_readfirstlane_b32 s57, v4")
        k.raw("s_nop 4")
    k.dump("s57", 16)
    k.label("L_op_end")
    e("s_endpgm")
    return k

HEADER = """; Kernarg layout for this problem (64 bytes, ptrs only, base s[0:1]):
;   offset   0: d_in[0] x  shape=(16, 144, 448) dtype=bfloat16 strides=(129024, 896, 2) contiguous=True
;   offset   8: d_in[1] k_cache  shape=(16, 16, 512, 256) dtype=bfloat16 strides=(4194304, 262144, 512, 2) contiguous=True
;   offset  16: d_in[2] v_cache  shape=(16, 16, 512, 256) dtype=bfloat16 strides=(4194304, 262144, 512, 2) contiguous=True
;   offset  24: d_in[3] wq  shape=(448, 4096) dtype=bfloat16 strides=(8192, 2) contiguous=True
;   offset  32: d_in[4] wo  shape=(4096, 448) dtype=bfloat16 strides=(896, 2) contiguous=True
;   offset  40: d_out     shape=(16, 144, 448) dtype=bfloat16 (2 bytes/elem)
;   offset  48: d_debug   256 bytes
;   offset  56: d_ws      268435456 bytes workspace
; Generated by a Python generator script (hand-designed schedule).
; Launch 1: fused Q-projection + attention per (batch, head); writes O (bf16) to d_ws.
; Launch 2: output projection O @ Wo.
; @launch kernel=standalone__mha_block_cached__near_ridge_kernel grid=(256,1,1) block=(256,1,1) lds=%d
; @launch kernel=oproj_kernel grid=(256,1,1) block=(512,1,1) lds=131072
.amdgcn_target "amdgcn-amd-amdhsa--gfx950"
.text
""" % LDS1

def main():
    a = gen_attn(); o = gen_oproj()
    s = HEADER
    s += ".globl standalone__mha_block_cached__near_ridge_kernel\n.p2align 8\n.type standalone__mha_block_cached__near_ridge_kernel,@function\n"
    s += a.text()
    s += ".globl oproj_kernel\n.p2align 8\n.type oproj_kernel,@function\n"
    s += o.text()
    s += """.section .rodata,"a"
.p2align 6
.amdhsa_kernel standalone__mha_block_cached__near_ridge_kernel
  .amdhsa_next_free_vgpr 512
  .amdhsa_next_free_sgpr 96
  .amdhsa_accum_offset 256
  .amdhsa_group_segment_fixed_size 0
  .amdhsa_kernarg_size 64
  .amdhsa_user_sgpr_count 2
  .amdhsa_user_sgpr_kernarg_segment_ptr 1
  .amdhsa_system_sgpr_workgroup_id_x 1
.end_amdhsa_kernel
.p2align 6
.amdhsa_kernel oproj_kernel
  .amdhsa_next_free_vgpr 256
  .amdhsa_next_free_sgpr 96
  .amdhsa_accum_offset 256
  .amdhsa_group_segment_fixed_size 0
  .amdhsa_kernarg_size 64
  .amdhsa_user_sgpr_count 2
  .amdhsa_user_sgpr_kernarg_segment_ptr 1
  .amdhsa_system_sgpr_workgroup_id_x 1
.end_amdhsa_kernel
"""
    out = sys.argv[1] if len(sys.argv) > 1 else "standalone__mha_block_cached__near_ridge.s"
    open(out, "w").write(s)
    print("attn counts", a.count, "nops", a.nops)
    print("oproj counts", o.count, "nops", o.nops)

main()
```

```python
import sys, math
sys.path.insert(0, 'gen')
from asmlib import *

C1 = math.log2(math.e) / 16.0
import os
DBG = int(os.environ.get('DBG','0'))
DBGWG = int(os.environ.get('DBGWG','37'))
KRATE = int(os.environ.get('KRATE','2'))
K0 = int(os.environ.get('K0','8'))
VEXP = int(os.environ.get('VEXP','7'))
NOWQ = int(os.environ.get('NOWQ','0'))
NOXR = int(os.environ.get('NOXR','0'))
NOPERM = int(os.environ.get('NOPERM','0'))
KFLAGS = os.environ.get('KFLAGS',' nt')
OSTF = os.environ.get('OSTF','')
OLDF = os.environ.get('OLDF','')
WOF = os.environ.get('WOF','')
WQF = os.environ.get('WQF','')
XF = os.environ.get('XF','')
LDS_MX = 147456
LDS_SUM = LDS_MX + 2304
LDS_OST = LDS_SUM + 2304
LDS1 = LDS_OST + 8192

def add_stamp(k, sb=64):
    k.nst = 0
    def stamp():
        if not DBG: return
        k.raw("s_memtime s[62:63]")
        k.raw("s_waitcnt lgkmcnt(0)")
        k.raw(f"s_mov_b32 s{sb+k.nst}, s62")
        k.nst += 1
    k.stamp = stamp
    def dump(waveS, base):
        if not DBG: return
        k.raw(f"s_cmp_lg_u32 s2, {DBGWG}")
        k.raw(f"s_cbranch_scc1 L_nodump{base}")
        k.raw("s_load_dwordx2 s[60:61], s[0:1], 48")
        k.raw("s_waitcnt lgkmcnt(0)")
        k.raw("s_mov_b32 s62, 256")
        k.raw("s_mov_b32 s63, 0x20000")
        k.raw(f"v_mov_b32 v1, 0")
        k.raw(f"s_cmp_lg_u32 {waveS}, 0")
        k.raw(f"s_cbranch_scc1 L_nodump{base}")
        for i in range(k.nst):
            k.raw(f"s_sub_u32 s58, s{sb+i}, s{sb}")
            k.raw(f"v_mov_b32 v2, s58")
            k.raw(f"buffer_store_dword v2, v1, s[60:63], 0 offen offset:{(base+i)*4}")
        k.raw("s_waitcnt vmcnt(0)")
        k.label(f"L_nodump{base}")
    k.dump = dump

def gen_attn():
    k = Asm()
    add_stamp(k)
    e = k.raw
    k.label("standalone__mha_block_cached__near_ridge_kernel")
    e("s_cmp_ge_u32 s2, 256")
    e("s_cbranch_scc1 L_attn_end")
    k.stamp()
    e("s_load_dwordx8 s[36:43], s[0:1], 0")
    e("s_load_dwordx2 s[44:45], s[0:1], 56")
    e("s_load_dwordx2 s[88:89], s[0:1], 32")
    e("v_and_b32 v1, 63, v0")
    e("v_and_b32 v2, 15, v0")
    e("v_lshrrev_b32 v3, 4, v1")
    e("v_lshrrev_b32 v27, 6, v0")
    e("s_lshr_b32 s6, s2, 3")
    e("s_and_b32 s7, s2, 7")
    e("s_and_b32 s4, s7, 3")
    e("s_lshl_b32 s4, s4, 2")
    e("s_and_b32 s3, s6, 3")
    e("s_add_u32 s4, s4, s3")
    e("s_lshr_b32 s3, s7, 2")
    e("s_lshl_b32 s3, s3, 3")
    e("s_lshr_b32 s6, s6, 2")
    e("s_add_u32 s3, s3, s6")
    e("s_lshl_b32 s7, s3, 4")
    e("s_add_u32 s7, s7, s4")
    e("v_readfirstlane_b32 s5, v27")
    e("s_mov_b32 s33, " + f32hex(C1))
    e("s_mov_b32 s34, 0x05040100")
    e("s_mov_b32 s35, 0x07060302")
    e("v_lshrrev_b32 v28, 1, v3")
    e("v_xor_b32 v29, v3, v28")
    e("v_and_b32 v29, 1, v29")
    e("v_lshl_or_b32 v29, v29, 1, v28")
    e("v_and_b32 v30, 3, v1")
    e("v_xor_b32 v29, v29, v30")
    e("v_lshrrev_b32 v30, 2, v1")
    e("v_mul_u32_u24 v4, 896, v30")
    e("v_lshl_add_u32 v4, v29, 4, v4")
    e("v_lshl_add_u32 v4, v27, 6, v4")
    e("v_lshrrev_b32 v30, 2, v2")
    e("v_lshrrev_b32 v28, 1, v30")
    e("v_xor_b32 v29, v30, v28")
    e("v_and_b32 v29, 1, v29")
    e("v_lshl_or_b32 v29, v29, 1, v28")
    e("v_xor_b32 v29, v29, v3")
    e("v_lshlrev_b32 v5, 6, v2")
    e("v_lshl_add_u32 v5, v29, 4, v5")
    e("v_add_u32 v6, 0x10000, v5")
    e("v_lshlrev_b32 v7, 3, v2")
    e("v_lshl_add_u32 v7, v3, 16, v7")
    e("v_lshrrev_b32 v28, 1, v3")
    e("v_xor_b32 v29, v3, v28")
    e("v_and_b32 v29, 1, v29")
    e("v_lshl_or_b32 v29, v29, 1, v28")
    e("v_and_b32 v30, 3, v1")
    e("v_xor_b32 v29, v29, v30")
    e("v_lshrrev_b32 v30, 2, v1")
    e("v_lshlrev_b32 v8, 9, v30")
    e("v_lshl_add_u32 v8, v29, 4, v8")
    e("v_lshlrev_b32 v0, 4, v1")
    e("v_lshl_add_u32 v0, v27, 12, v0")
    e(f"v_add_u32 v0, {73728}, v0")
    e("v_lshlrev_b32 v9, 3, v2")
    e("v_lshl_add_u32 v9, v3, 12, v9")
    e("v_xor_b32 v28, v3, v2")
    e("v_lshlrev_b32 v28, 4, v28")
    e("v_lshl_add_u32 v18, v2, 9, v28")
    e("v_lshl_add_u32 v23, v2, 10, v28")
    e("v_lshrrev_b32 v28, 1, v3")
    e("v_xor_b32 v28, v28, v2")
    e("v_lshlrev_b32 v28, 4, v28")
    e("v_lshl_add_u32 v21, v2, 10, v28")
    e("v_lshl_add_u32 v21, v27, 8, v21")
    e("v_and_b32 v28, 1, v3")
    e("v_lshl_add_u32 v21, v28, 3, v21")
    e("s_lshl_b32 s28, s5, 10")
    e("s_lshl_b32 s29, s4, 9")
    e("s_lshl_b32 s6, s5, 7")
    e("s_add_u32 s29, s29, s6")
    e("s_lshl_b32 s30, s5, 16")
    e("s_mov_b32 s31, s6")
    e("s_mul_i32 s32, s3, 1179648")
    e("s_lshl_b32 s6, s4, 13")
    e("s_add_u32 s32, s32, s6")
    e("s_lshl_b32 s6, s5, 11")
    e("s_add_u32 s32, s32, s6")
    for t in range(8):
        e(f"s_add_u32 s{48+t}, s30, {t*8192}")
    e("s_waitcnt lgkmcnt(0)")
    e("s_mul_i32 s6, s3, 129024")
    e("s_add_u32 s8, s36, s6")
    e("s_addc_u32 s9, s37, 0")
    e("s_mov_b32 s10, 129024")
    e("s_mov_b32 s11, 0x20000")
    e("s_mov_b32 s12, s42")
    e("s_mov_b32 s13, s43")
    e("s_mov_b32 s14, 3670016")
    e("s_mov_b32 s15, 0x20000")
    e("s_lshl_b32 s6, s7, 18")
    e("s_add_u32 s16, s38, s6")
    e("s_addc_u32 s17, s39, 0")
    e("s_mov_b32 s18, 262144")
    e("s_mov_b32 s19, 0x20000")
    e("s_add_u32 s20, s40, s6")
    e("s_addc_u32 s21, s41, 0")
    e("s_mov_b32 s22, 262144")
    e("s_mov_b32 s23, 0x20000")
    e("s_mov_b32 s24, s44")
    e("s_mov_b32 s25, s45")
    e("s_mov_b32 s26, 18874368")
    e("s_mov_b32 s27, 0x20000")
    e("s_mov_b32 s90, 3670016")
    e("s_mov_b32 s91, 0x20000")
    e("s_add_u32 s84, s44, 33554432")
    e("s_addc_u32 s85, s45, 0")
    e("s_mov_b32 s86, 3670016")
    e("s_mov_b32 s87, 0x20000")
    SX, SWQ, SK, SV, SO = "s[8:11]", "s[12:15]", "s[16:19]", "s[20:23]", "s[24:27]"

    def dma(sp, m):
        e(f"s_add_u32 m0, s28, {m*14336 + sp*4096}")
        e(f"s_mov_b32 s46, {m*14336 + sp*256}")
        return k.vdma(V(4), SX, "s46", flags=XF)
    e("s_cmp_ge_u32 s5, 2")
    e("s_cbranch_scc1 L_skipdma")
    for m in range(9):
        dma(3, m)
    k.label("L_skipdma")

    NW = 6
    WRAW = lambda st, j: V(32 + st*16 + j*2, 2)
    WFR = lambda st, t: V(128 + st*16 + t*4, 4)
    FR = lambda m: V(176 + m*4, 4)
    ACCQ = lambda m, t: A((m*4+t)*4, 4)
    VB_A = [V(160 + 4*i, 4) for i in range(4)]
    VB_B = [V(212 + 4*i, 4) for i in range(8)]
    AR = [A(144 + 4*i, 4) for i in range(28)]
    init_slots = VB_A + VB_B + AR
    stmp = [46, 47, 58, 59]
    sidx = [0]
    def stemp():
        sidx[0] = (sidx[0] + 1) % len(stmp)
        return stmp[sidx[0]]

    wq_tok = {}
    def wq_loads(s):
        fl = []
        for j in range(8):
            def f(j=j):
                st = stemp()
                e(f"s_add_u32 s{st}, s29, {(32*s+j)*8192}")
                wq_tok[s] = k.vload("buffer_load_dwordx2", WRAW(s % NW, j), V(7), SWQ, f"s{st}", flags=WQF)
            fl.append(f)
        return fl
    def issue_wq(s):
        for f in wq_loads(s): f()
    k_tok = {}
    k_slot = {}
    k_next = [0]
    korder = [(2*sp + ee, t) for sp in range(4) for t in range(4, 8) for ee in range(2)] + \
             [(2*sp + ee, t) for sp in range(4) for t in range(0, 4) for ee in range(2)]
    def issue_k(slot):
        s_, t = korder[k_next[0]]; k_next[0] += 1
        i = s_*8 + t
        k_slot[i] = slot
        k_tok[i] = k.vload("buffer_load_dwordx4", slot, V(8), SK, f"s{48+t}", offset=s_*64, flags=KFLAGS)
    kp_tok = {}
    ksc = [0]
    def kperm(i):
        k.wait_vm(k_tok[i])
        sl = k_slot[i]
        off = (ksc[0] % 4) * 1024; ksc[0] += 1
        k.dswrite("ds_write_b128", V(0), sl, off)
        kp_tok[i] = k.dsread("ds_read_b128", sl, V(5), off)
    v_tok = {}
    v_reg = {}
    def v_loads(u, regs):
        v_reg[u] = regs
        fl = []
        for j in range(8):
            def f(j=j):
                st = stemp()
                e(f"s_add_u32 s{st}, s31, {u*16384}")
                v_tok[u] = k.vload("buffer_load_dwordx2", regs[j], V(9), SV, f"s{st}", offset=j*512, flags=KFLAGS)
            fl.append(f)
        return fl
    def issue_v(u, regs):
        for f in v_loads(u, regs): f()

    def perm_fill(raws, out):
        fl = []
        for t in range(4):
            for i in range(4):
                hi = raws[2*i+1]; lo = raws[2*i]
                def f(t=t, i=i, hi=hi, lo=lo):
                    o = out(t)
                    k.valu("v_perm_b32", V(o[1]+i), V(hi[1] + (t >> 1)), V(lo[1] + (t >> 1)), "s35" if (t & 1) else "s34")
                fl.append(f)
        return fl

    xtok = {}
    ring_next = 0
    for m in range(9): xtok[0] = dma(0, m)
    issue_wq(0); issue_wq(1); issue_wq(2)
    for _ in range(K0):
        issue_k(init_slots[ring_next]); ring_next += 1
    k.wait_vm(xtok[0])
    k.barrier()
    k.stamp()

    def xread(m, s):
        off = (m*14 + s) * 1024
        if off < 65536: return k.dsread("ds_read_b128", FR(m), V(5), off)
        return k.dsread("ds_read_b128", FR(m), V(6), off - 65536)
    fr_tok = {}
    for m in range(9): fr_tok[m] = xread(m, 0)
    k.wait_vm(wq_tok[0])
    for f in perm_fill([WRAW(0, j) for j in range(8)], lambda t: WFR(0, t)): f()
    mem = []
    def dma_f(sp, m):
        def f(): xtok[sp] = dma(sp, m)
        return f
    def k_f():
        nonlocal ring_next
        if ring_next < len(init_slots):
            issue_k(init_slots[ring_next]); ring_next += 1
    mem += [dma_f(1, m) for m in range(9)] + wq_loads(3) + wq_loads(4) + [dma_f(2, m) for m in range(9)]
    for s in range(14):
        if s in (3, 7):
            k.wait_vm(xtok[(s+1)//4])
            k.barrier()
        if s + 5 < 14: mem += wq_loads(s+5)
        mem += [k_f] * KRATE
        fill = []
        if s + 1 < 14:
            fill.append(lambda s=s: k.wait_vm(wq_tok[s+1]))
            fill += perm_fill([WRAW((s+1) % NW, j) for j in range(8)], lambda t, s=s: WFR((s+1) % 2, t))
        n = 0
        for m in range(9):
            k.wait_lg(fr_tok[m])
            for t in range(4):
                k.mfma(ACCQ(m, t), FR(m), WFR(s % 2, t), ACCQ(m, t) if s else 0)
                if n % 2 == 0 and mem: mem.pop(0)()
                if n >= 12 and fill: fill.pop(0)()
                n += 1
            if s + 1 < 14: fr_tok[m] = xread(m, s+1)
        while fill: fill.pop(0)()
    while mem: mem.pop(0)()
    k.stamp()
    while ring_next < len(init_slots):
        issue_k(init_slots[ring_next]); ring_next += 1
    k.stamp()
    k.barrier()
    k.valu("v_and_b32", V(28), 1, V(27))
    k.valu("v_lshlrev_b32", V(28), 3, V(28))
    k.valu("v_lshrrev_b32", V(29), 1, V(2))
    k.valu("v_add_u32", V(28), V(28), V(29))
    k.valu("v_lshrrev_b32", V(29), 1, V(27))
    k.valu("v_lshlrev_b32", V(29), 8, V(29))
    k.valu("v_and_b32", V(30), 1, V(2))
    k.valu("v_lshl_add_u32", V(29), V(30), 3, V(29))
    for r in range(4):
        k.valu("v_lshl_add_u32", V(30), V(3), 2, r)
        k.valu("v_xor_b32", V(31), V(28), V(30))
        k.valu("v_lshl_add_u32", V(10+r), V(31), 4, V(29))
        k.valu("v_lshl_add_u32", V(10+r), V(30), 9, V(10+r))
        k.valu("v_add_u32", V(14+r), 32768, V(10+r))
    tb = 244
    for m in range(9):
        for r in range(4):
            T = tb + ((m*4 + r) % 2) * 6
            for t in range(4):
                k.valu("v_accvgpr_read_b32", V(T+t), A((m*4+t)*4 + r))
            k.valu("v_cvt_pk_bf16_f32", V(T+4), V(T), V(T+1))
            k.valu("v_cvt_pk_bf16_f32", V(T+5), V(T+2), V(T+3))
            if m < 4: k.dswrite("ds_write_b64", V(10+r), V(T+4, 2), m*8192)
            else: k.dswrite("ds_write_b64", V(14+r), V(T+4, 2), (m-4)*8192)
    k.wait_lg_all()
    k.barrier()
    k.stamp()

    def ACCS(t, m):
        if t < 4: return V(32 + (m*4 + t)*4, 4)
        return A((m*4 + (t-4))*4, 4)
    def qaddr(s):
        k.valu("v_xor_b32", V(19), (s & 3) << 6, V(18))
        k.valu("v_add_u32", V(20), 65536, V(19))
    def qread(m, s):
        off = m*8192 + (s >> 2)*256
        if off < 65536: return k.dsread("ds_read_b128", FR(m), V(19), off)
        return k.dsread("ds_read_b128", FR(m), V(20), off - 65536)
    k.valu("v_lshl_add_u32", V(5), V(27), 12, V(5))
    k.valu("v_add_u32", V(5), 73728, V(5))
    seq = [(p, s_) for p in (0, 1) for s_ in range(8)]
    tiles = lambda p: range(4, 8) if p == 0 else range(0, 4)
    qaddr(0)
    for t in tiles(0): kperm(t)
    for m in range(9): fr_tok[m] = qread(m, 0)
    v_next = 0
    vfree = []
    mem = []
    kq = k_next[0]
    k.valu("v_mul_u32_u24", V(28), 28, V(27))
    k.valu("v_add_u32", V(28), V(28), V(1))
    k.valu("v_cmp_le_u32", "vcc", 56, V(28))
    k.raw("s_nop 1")
    k.valu("v_cndmask_b32", V(29), 0, 1, "vcc")
    k.valu("v_mul_u32_u24", V(30), 56, V(29))
    k.valu("v_sub_u32", V(28), V(28), V(30))
    k.valu("v_mul_u32_u24", V(30), 7168, V(29))
    k.valu("v_lshl_add_u32", V(96), V(28), 4, V(30))
    e("s_mul_i32 s92, s2, 14336")
    e("s_add_u32 s93, s92, 3584")
    k.valu("v_lshrrev_b32", V(30), 3, V(28))
    k.valu("v_lshlrev_b32", V(97), 12, V(30))
    k.valu("v_and_b32", V(30), 7, V(28))
    k.valu("v_lshl_add_u32", V(97), V(30), 5, V(97))
    k.valu("v_lshl_add_u32", V(97), V(29), 8, V(97))
    e("s_lshr_b32 s94, s2, 1")
    e("s_mul_i32 s94, s94, 28672")
    e("s_and_b32 s95, s2, 1")
    e("s_lshl_b32 s95, s95, 9")
    e("s_add_u32 s94, s94, s95")
    wo_tok = [None]
    def wo_load(j):
        def f():
            e("s_mov_b64 exec, 0xfffffff")
            wo_tok[0] = k.vload("buffer_load_dwordx4", V(32 + 4*j, 4), V(96), "s[88:91]", "s92" if j < 4 else "s93", offset=(j & 3)*896)
            e("s_mov_b64 exec, -1")
        return f
    mem += [wo_load(j) for j in range(8)]
    def wo_perm(e_, i2):
        return lambda: k.valu("v_perm_b32", V(64 + 4*e_ + i2), V(32 + 4*(2*i2+1) + (e_ >> 1)), V(32 + 4*(2*i2) + (e_ >> 1)), "s35" if (e_ & 1) else "s34")
    def wo_store(e_):
        def f():
            e("s_mov_b64 exec, 0xfffffff")
            k.vstore("buffer_store_dwordx4", V(64 + 4*e_, 4), V(97), "s[84:87]", "s94", offset=(e_ & 3)*1024 + (e_ >> 2)*16)
            e("s_mov_b64 exec, -1")
        return f
    wfill = []
    for idx, (p, s) in enumerate(seq):
        nxt = seq[idx+1] if idx + 1 < len(seq) else None
        if nxt: qaddr(nxt[1])
        if idx == 5:
            wfill = [lambda: k.wait_vm(wo_tok[0])] + [wo_perm(e_, i2) for e_ in range(8) for i2 in range(4)]
        if idx == 6:
            mem = [wo_store(e_) for e_ in range(8)] + mem
        n = 0
        for m in range(9):
            k.wait_lg(fr_tok[m])
            for t in tiles(p):
                i = s*8 + t
                k.wait_lg(kp_tok[i])
                k.mfma(ACCS(t, m), k_slot[i], FR(m), ACCS(t, m) if s else 0)
                if n % 3 == 0 and mem: mem.pop(0)()
                if wfill: wfill.pop(0)()
                n += 1
            if nxt:
                fr_tok[m] = qread(m, nxt[1])
                if 4 <= m < 8: kperm(nxt[1]*8 + list(tiles(nxt[0]))[m-4])
        for t in tiles(p):
            sl = k_slot[s*8 + t]
            if sl in VB_A: continue
            if kq < 64:
                mem.append(lambda sl=sl: issue_k(sl)); kq += 1
            elif sl in AR: vfree.append(sl)
        while len(vfree) >= 4 and v_next < 7:
            sls = vfree[:4]; vfree = vfree[4:]
            regs = []
            for sl in sls:
                regs += [A(sl[1], 2), A(sl[1] + 2, 2)]
            mem += v_loads(v_next, regs); v_next += 1
    while mem: mem.pop(0)()
    assert v_next == 7, v_next

    k.stamp()
    NEGM = lambda m: V(212 + m)
    PSUM = lambda m: V(221 + m)
    k.valu("v_lshlrev_b32", V(28), 4, V(2))
    k.valu("v_lshl_add_u32", V(28), V(27), 2, V(28))
    k.valu("v_add_u32", V(28), LDS_MX, V(28))
    k.valu("v_lshlrev_b32", V(29), 4, V(2))
    k.valu("v_add_u32", V(29), LDS_MX, V(29))
    for m in range(9):
        mx = NEGM(m)
        vals = []
        for t in range(4):
            b = ACCS(t, m)[1]
            vals += [V(b+r) for r in range(4)]
        k.valu("v_max3_f32", mx, vals[0], vals[1], vals[2])
        k.valu("v_max3_f32", mx, vals[3], vals[4], mx)
        for i in range(5, 15, 2):
            k.valu("v_max3_f32", mx, vals[i], vals[i+1], mx)
        k.valu("v_max_f32", mx, vals[15], mx)
        for t in range(4, 8):
            b = ACCS(t, m)[1]
            T = 176 + (t-4)*4
            for r in range(4):
                k.valu("v_accvgpr_read_b32", V(T+r), A(b+r))
        for t in range(4, 8):
            T = 176 + (t-4)*4
            k.valu("v_max3_f32", mx, V(T), V(T+1), mx)
            k.valu("v_max3_f32", mx, V(T+2), V(T+3), mx)
        k.valu("v_mov_b32", V(230), mx)
        k.valu("v_permlane32_swap_b32", V(230), mx, permlane=True, extra_w=(mx,))
        k.valu("v_max_f32", mx, V(230), mx)
        k.valu("v_mov_b32", V(230), mx)
        k.valu("v_permlane16_swap_b32", V(230), mx, permlane=True, extra_w=(mx,))
        k.valu("v_max_f32", mx, V(230), mx)
        k.dswrite("ds_write_b32", V(28), mx, m*256)
    k.wait_lg_all()
    k.barrier()
    k.stamp()
    toks = []
    for m in range(9):
        toks.append(k.dsread("ds_read_b128", V(176 + m*4, 4), V(29), m*256))
    k.valu("v_mov_b32", V(231), "s33")
    for m in range(9):
        k.wait_lg(toks[m])
        T = 176 + m*4
        k.valu("v_max3_f32", NEGM(m), V(T), V(T+1), V(T+2))
        k.valu("v_max_f32", NEGM(m), V(T+3), NEGM(m))
        k.valu("v_mul_f32", NEGM(m), V(231), NEGM(m))
        k.valu("v_sub_f32", NEGM(m), 0, NEGM(m))
    tsel = 0
    for m in range(9):
        if m == 0: k.valu("v_mov_b32", V(22), V(21))
        else: k.valu("v_add_u32", V(22), m*16384, V(21))
        first = True
        for t in range(8):
            if t < 4:
                b = ACCS(t, m)[1]
                S = [V(b+r) for r in range(4)]
            else:
                T = 176 + (tsel % 4)*4; tsel += 1
                ab = ACCS(t, m)[1]
                for r in range(4):
                    k.valu("v_accvgpr_read_b32", V(T+r), A(ab+r))
                S = [V(T+r) for r in range(4)]
            for r in range(4):
                k.valu("v_fma_f32", S[r], S[r], "s33", NEGM(m))
            for r in range(4):
                k.valu("v_exp_f32", S[r], S[r], trans=True)
            P = 232 + (t % 4)*2
            AD = 240 + (t % 4)
            k.valu("v_xor_b32", V(AD), t << 5, V(22))
            k.valu("v_cvt_pk_bf16_f32", V(P), S[0], S[1])
            k.valu("v_cvt_pk_bf16_f32", V(P+1), S[2], S[3])
            if first:
                k.valu("v_add_f32", PSUM(m), S[0], S[1]); first = False
            else:
                k.valu("v_add_f32", PSUM(m), S[0], PSUM(m))
                k.valu("v_add_f32", PSUM(m), S[1], PSUM(m))
            k.valu("v_add_f32", PSUM(m), S[2], PSUM(m))
            k.valu("v_add_f32", PSUM(m), S[3], PSUM(m))
            k.dswrite("ds_write_b64", V(AD), V(P, 2))
        if m < VEXP:
            k.wait_vm(v_tok[m])
            issue_v(7 + m, [V(32 + m*16 + 2*j, 2) for j in range(8)])
    k.valu("v_mul_u32_u24", V(28), 576, V(27))
    k.valu("v_lshl_add_u32", V(28), V(2), 2, V(28))
    k.valu("v_add_u32", V(28), LDS_SUM, V(28))
    for m in range(9):
        ps = PSUM(m)
        k.valu("v_mov_b32", V(230), ps)
        k.valu("v_permlane32_swap_b32", V(230), ps, permlane=True, extra_w=(ps,))
        k.valu("v_add_f32", ps, V(230), ps)
        k.valu("v_mov_b32", V(230), ps)
        k.valu("v_permlane16_swap_b32", V(230), ps, permlane=True, extra_w=(ps,))
        k.valu("v_add_f32", ps, V(230), ps)
        k.dswrite("ds_write_b32", V(28), ps, m*64)
    k.wait_lg_all()
    k.barrier()
    k.stamp()

    ACCO = lambda m, t: A((m*4+t)*4, 4)
    VFR = lambda st, t: V(212 + st*16 + t*4, 4)
    def paddr(u):
        k.valu("v_xor_b32", V(24), (u & 3) << 6, V(23))
        k.valu("v_add_u32", V(25), 65536, V(24))
        k.valu("v_add_u32", V(26), 131072, V(24))
    def pread(m, u):
        off = m*16384 + (u >> 2)*256
        return k.dsread("ds_read_b128", FR(m), V(24 + off // 65536), off % 65536)
    def vprep(u):
        fl = [lambda: k.wait_vm(v_tok[u])]
        regs = v_reg[u]
        if regs[0][0] == 'a':
            tmp = [244, 246, 248, 250, 252, 254, 10, 12]
            for j in range(8):
                for q in range(2):
                    fl.append(lambda j=j, q=q: k.valu("v_accvgpr_read_b32", V(tmp[j]+q), A(regs[j][1]+q)))
            raws = [V(tmp[j], 2) for j in range(8)]
        else:
            raws = regs
        fl += perm_fill(raws, lambda t: VFR(u % 2, t))
        return fl
    paddr(0)
    for m in range(9): fr_tok[m] = pread(m, 0)
    for f in vprep(0): f()
    for u in range(16):
        fill = []
        mem = []
        if u + 1 < 16:
            paddr(u+1)
            fill = vprep(u+1)
        if 7 + VEXP + u < 16:
            mem = v_loads(7 + VEXP + u, [V(32 + (VEXP+u)*16 + 2*j, 2) for j in range(8)])
        n = 0
        for m in range(9):
            k.wait_lg(fr_tok[m])
            for t in range(4):
                k.mfma(ACCO(m, t), FR(m), VFR(u % 2, t), ACCO(m, t) if u else 0)
                if fill: fill.pop(0)()
                if n % 4 == 3 and mem: mem.pop(0)()
                n += 1
            if u + 1 < 16: fr_tok[m] = pread(m, u+1)
        while fill: fill.pop(0)()
        while mem: mem.pop(0)()

    k.stamp()
    k.valu("v_lshlrev_b32", V(28), 4, V(3))
    k.valu("v_add_u32", V(28), LDS_SUM, V(28))
    for m in range(9):
        for w in range(4):
            k.dsread("ds_read_b128", V(32 + (m*4+w)*4, 4), V(28), w*576 + m*64)
    k.valu("v_lshrrev_b32", V(29), 1, V(2))
    k.valu("v_lshlrev_b32", V(30), 2, V(3))
    k.valu("v_xor_b32", V(30), V(30), V(29))
    k.valu("v_lshlrev_b32", V(30), 4, V(30))
    k.valu("v_lshl_add_u32", V(30), V(29), 8, V(30))
    k.valu("v_and_b32", V(29), 1, V(2))
    k.valu("v_lshl_add_u32", V(30), V(29), 3, V(30))
    k.valu("v_lshl_add_u32", V(30), V(27), 11, V(30))
    k.valu("v_add_u32", V(10), LDS_OST, V(30))
    for r in range(1, 4):
        k.valu("v_xor_b32", V(10+r), r << 4, V(10))
    k.valu("v_xor_b32", V(30), V(2), V(3))
    k.valu("v_lshlrev_b32", V(30), 4, V(30))
    k.valu("v_lshl_add_u32", V(30), V(3), 8, V(30))
    k.valu("v_lshl_add_u32", V(30), V(27), 11, V(30))
    k.valu("v_add_u32", V(14), LDS_OST, V(30))
    k.valu("v_xor_b32", V(15), 64, V(14))
    k.valu("v_lshlrev_b32", V(16), 4, V(1))
    k.wait_lg_all()
    for m in range(9):
        b = 32 + m*16
        for r in range(4):
            k.valu("v_add_f32", V(b+r), V(b+r), V(b+4+r))
            k.valu("v_add_f32", V(b+8+r), V(b+8+r), V(b+12+r))
        for r in range(4):
            k.valu("v_add_f32", V(b+r), V(b+r), V(b+8+r))
        for r in range(4):
            k.valu("v_rcp_f32", V(b+r), V(b+r), trans=True)
    pend = None
    for m in range(9):
        b = 32 + m*16
        for r in range(4):
            T = 176 + ((m*4 + r) % 4) * 6
            for t in range(4):
                k.valu("v_accvgpr_read_b32", V(T+t), A((m*4+t)*4 + r))
            for t in range(4):
                k.valu("v_mul_f32", V(T+t), V(T+t), V(b+r))
            k.valu("v_cvt_pk_bf16_f32", V(T+4), V(T), V(T+1))
            k.valu("v_cvt_pk_bf16_f32", V(T+5), V(T+2), V(T+3))
            k.dswrite("ds_write_b64", V(10+r), V(T+4, 2))
        RB = 212 + (m % 2)*8
        t0 = k.dsread("ds_read_b128", V(RB, 4), V(14))
        t1 = k.dsread("ds_read_b128", V(RB+4, 4), V(15), 1024)
        if pend is not None:
            pm, pRB, pt1 = pend
            k.wait_lg(pt1)
            st = stemp()
            e(f"s_add_u32 s{st}, s32, {pm*131072}")
            k.vstore("buffer_store_dwordx4", V(pRB, 4), V(16), SO, f"s{st}", flags=OSTF)
            k.vstore("buffer_store_dwordx4", V(pRB+4, 4), V(16), SO, f"s{st}", offset=1024, flags=OSTF)
        pend = (m, RB, t1)
    pm, pRB, pt1 = pend
    k.wait_lg(pt1)
    st = stemp()
    e(f"s_add_u32 s{st}, s32, {pm*131072}")
    k.vstore("buffer_store_dwordx4", V(pRB, 4), V(16), SO, f"s{st}", flags=OSTF)
    k.vstore("buffer_store_dwordx4", V(pRB+4, 4), V(16), SO, f"s{st}", offset=1024, flags=OSTF)
    k.stamp()
    k.wait_vm_all()
    k.stamp()
    k.dump("s5", 0)
    k.label("L_attn_end")
    e("s_endpgm")
    return k

def gen_oproj():
    k = Asm()
    add_stamp(k, 84)
    e = k.raw
    k.label("oproj_kernel")
    e("s_cmp_ge_u32 s2, 256")
    e("s_cbranch_scc1 L_op_end")
    e("s_and_b32 s3, s2, 7")
    e("s_lshl_b32 s3, s3, 5")
    e("s_lshr_b32 s4, s2, 3")
    e("s_add_u32 s3, s3, s4")
    e("s_cmp_ge_u32 s3, 252")
    e("s_cbranch_scc1 L_op_end")
    k.stamp()
    e("s_load_dwordx4 s[36:39], s[0:1], 32")
    e("s_load_dwordx2 s[40:41], s[0:1], 56")
    e("s_mul_i32 s4, s3, 9363")
    e("s_lshr_b32 s4, s4, 16")
    e("s_mul_i32 s5, s4, 7")
    e("s_sub_u32 s5, s3, s5")
    e("v_and_b32 v1, 63, v0")
    e("v_and_b32 v2, 15, v0")
    e("v_lshrrev_b32 v3, 4, v1")
    e("v_lshrrev_b32 v4, 6, v0")
    e("s_mov_b32 s34, 0x05040100")
    e("s_mov_b32 s35, 0x07060302")
    e("v_lshlrev_b32 v5, 4, v1")
    e("v_lshl_add_u32 v5, v4, 14, v5")
    e("s_mov_b32 s6, 458752")
    e("v_mul_lo_u32 v6, s6, v4")
    e("v_lshl_add_u32 v6, v1, 4, v6")
    e("s_lshl_b32 s6, s4, 19")
    for m in range(4):
        for q in range(4):
            e(f"s_add_u32 s{64+m*4+q}, s6, {m*131072 + q*4096}")
    e("s_lshl_b32 s7, s5, 7")
    e("s_lshl_b32 s33, s5, 12")
    e("s_waitcnt lgkmcnt(0)")
    e("s_mov_b32 s8, s40"); e("s_mov_b32 s9, s41"); e("s_mov_b32 s10, 18874368"); e("s_mov_b32 s11, 0x20000")
    e("s_add_u32 s12, s40, 33554432"); e("s_addc_u32 s13, s41, 0"); e("s_mov_b32 s14, 3670016"); e("s_mov_b32 s15, 0x20000")
    e("s_mov_b32 s16, s38"); e("s_mov_b32 s17, s39"); e("s_mov_b32 s18, 2064384"); e("s_mov_b32 s19, 0x20000")
    SA, SB, SOUT = "s[8:11]", "s[12:15]", "s[16:19]"
    NS = 5
    AFR = lambda st, m: V(96 + st*32 + m*4, 4)
    BRAW = lambda st, j: V(96 + st*32 + 16 + j*2, 2)
    BFR = lambda st, t: V(16 + st*8*0 + t*4, 4) if False else V(16 + (st % 1)*16 + t*4, 4)
    ACC = lambda m, t: V(32 + (m*4+t)*4, 4)
    tokA = {}; tokB = {}
    sidx = [0]
    def stemp():
        sidx[0] = (sidx[0] + 1) % 4
        return 52 + sidx[0]
    BF = lambda st, t: V(96 + st*32 + 16 + t*4, 4)
    def loads(s):
        st = s % NS
        fl = []
        def fb(t):
            def f():
                if t == 0:
                    loads.sb = stemp()
                    e(f"s_add_u32 s{loads.sb}, s33, {s*28672}")
                tokB[s] = k.vload("buffer_load_dwordx4", BF(st, t), V(6), SB, f"s{loads.sb}", offset=t*1024)
            return f
        def fa(m):
            def f():
                tokA[s] = k.vload("buffer_load_dwordx4", AFR(st, m), V(5), SA, f"s{64+m*4+(s>>2)}", offset=(s&3)*1024, flags=OLDF)
            return f
        return [fb(0), fa(0), fb(1), fa(1), fb(2), fa(2), fb(3), fa(3)]
    for s in range(NS):
        for f in loads(s): f()
    k.stamp()
    for s in range(16):
        st = s % NS
        k.wait_vm(tokA[s])
        for m in range(4):
            for t in range(4):
                k.mfma(ACC(m, t), AFR(st, m), BF(st, t), ACC(m, t) if s else 0)
        if s + NS < 16:
            for f in loads(s + NS): f()
    k.stamp()
    k.valu("v_lshlrev_b32", V(8), 4, V(1))
    k.valu("v_lshl_add_u32", V(8), V(4), 14, V(8))
    for m in range(4):
        for t in range(4):
            k.dswrite("ds_write_b128", V(8), ACC(m, t), (m*4+t)*1024)
    k.wait_lg_all()
    k.barrier()
    k.valu("v_lshrrev_b32", V(9), 1, V(4))
    k.valu("v_and_b32", V(10), 1, V(4))
    k.valu("v_lshlrev_b32", V(8), 4, V(1))
    k.valu("v_lshl_add_u32", V(8), V(9), 12, V(8))
    k.valu("v_lshl_add_u32", V(8), V(10), 3, V(8))
    k.valu("v_add_u32", V(11), 65536, V(8))
    for t in range(4):
        for w in range(8):
            off = w*16384 + t*1024
            k.dsread("ds_read_b64", V(96 + (t*8 + w)*2, 2), V(8) if off < 65536 else V(11), off % 65536)
    k.wait_lg_all()
    for t in range(4):
        b = 96 + t*16
        for q in range(2):
            k.valu("v_add_f32", V(b+q), V(b+q), V(b+2+q))
            k.valu("v_add_f32", V(b+4+q), V(b+4+q), V(b+6+q))
            k.valu("v_add_f32", V(b+8+q), V(b+8+q), V(b+10+q))
            k.valu("v_add_f32", V(b+12+q), V(b+12+q), V(b+14+q))
        for q in range(2):
            k.valu("v_add_f32", V(b+q), V(b+q), V(b+4+q))
            k.valu("v_add_f32", V(b+8+q), V(b+8+q), V(b+12+q))
        for q in range(2):
            k.valu("v_add_f32", V(b+q), V(b+q), V(b+8+q))
    k.valu("v_lshlrev_b32", V(12), 4, V(9))
    k.valu("v_lshl_add_u32", V(12), V(3), 2, V(12))
    k.valu("v_lshl_add_u32", V(12), V(10), 1, V(12))
    k.valu("v_mul_u32_u24", V(12), 896, V(12))
    k.valu("v_lshl_add_u32", V(12), V(2), 3, V(12))
    e("s_mul_i32 s6, s4, 57344")
    e("s_add_u32 s6, s6, s7")
    for q in range(2):
        k.valu("v_cvt_pk_bf16_f32", V(16+q*2), V(96+q), V(112+q))
        k.valu("v_cvt_pk_bf16_f32", V(17+q*2), V(128+q), V(144+q))
        k.vstore("buffer_store_dwordx2", V(16+q*2, 2), V(12), SOUT, "s6", offset=q*896)
    k.wait_vm_all()
    k.stamp()
    if DBG:
        k.raw("v_readfirstlane_b32 s57, v4")
        k.raw("s_nop 4")
    k.dump("s57", 16)
    k.label("L_op_end")
    e("s_endpgm")
    return k

HEADER = """; Kernarg layout for this problem (64 bytes, ptrs only, base s[0:1]):
;   offset   0: d_in[0] x  shape=(16, 144, 448) dtype=bfloat16 strides=(129024, 896, 2) contiguous=True
;   offset   8: d_in[1] k_cache  shape=(16, 16, 512, 256) dtype=bfloat16 strides=(4194304, 262144, 512, 2) contiguous=True
;   offset  16: d_in[2] v_cache  shape=(16, 16, 512, 256) dtype=bfloat16 strides=(4194304, 262144, 512, 2) contiguous=True
;   offset  24: d_in[3] wq  shape=(448, 4096) dtype=bfloat16 strides=(8192, 2) contiguous=True
;   offset  32: d_in[4] wo  shape=(4096, 448) dtype=bfloat16 strides=(896, 2) contiguous=True
;   offset  40: d_out     shape=(16, 144, 448) dtype=bfloat16 (2 bytes/elem)
;   offset  48: d_debug   256 bytes
;   offset  56: d_ws      268435456 bytes workspace
; Generated by a Python generator script (hand-designed schedule).
; Launch 1: fused Q-projection + attention per (batch, head); writes O (bf16) to d_ws.
; Launch 2: output projection O @ Wo.
; @launch kernel=standalone__mha_block_cached__near_ridge_kernel grid=(256,1,1) block=(256,1,1) lds=%d
; @launch kernel=oproj_kernel grid=(256,1,1) block=(512,1,1) lds=131072
.amdgcn_target "amdgcn-amd-amdhsa--gfx950"
.text
""" % LDS1

def main():
    a = gen_attn(); o = gen_oproj()
    s = HEADER
    s += ".globl standalone__mha_block_cached__near_ridge_kernel\n.p2align 8\n.type standalone__mha_block_cached__near_ridge_kernel,@function\n"
    s += a.text()
    s += ".globl oproj_kernel\n.p2align 8\n.type oproj_kernel,@function\n"
    s += o.text()
    s += """.section .rodata,"a"
.p2align 6
.amdhsa_kernel standalone__mha_block_cached__near_ridge_kernel
  .amdhsa_next_free_vgpr 512
  .amdhsa_next_free_sgpr 96
  .amdhsa_accum_offset 256
  .amdhsa_group_segment_fixed_size 0
  .amdhsa_kernarg_size 64
  .amdhsa_user_sgpr_count 2
  .amdhsa_user_sgpr_kernarg_segment_ptr 1
  .amdhsa_system_sgpr_workgroup_id_x 1
.end_amdhsa_kernel
.p2align 6
.amdhsa_kernel oproj_kernel
  .amdhsa_next_free_vgpr 256
  .amdhsa_next_free_sgpr 96
  .amdhsa_accum_offset 256
  .amdhsa_group_segment_fixed_size 0
  .amdhsa_kernarg_size 64
  .amdhsa_user_sgpr_count 2
  .amdhsa_user_sgpr_kernarg_segment_ptr 1
  .amdhsa_system_sgpr_workgroup_id_x 1
.end_amdhsa_kernel
"""
    out = sys.argv[1] if len(sys.argv) > 1 else "standalone__mha_block_cached__near_ridge.s"
    open(out, "w").write(s)
    print("attn counts", a.count, "nops", a.nops)
    print("oproj counts", o.count, "nops", o.nops)

main()
```

```python
import sys, math
sys.path.insert(0, 'gen')
from asmlib import *

C1 = math.log2(math.e) / 16.0
import os
DBG = int(os.environ.get('DBG','0'))
DBGWG = int(os.environ.get('DBGWG','37'))
KRATE = int(os.environ.get('KRATE','2'))
K0 = int(os.environ.get('K0','8'))
SPACE = float(os.environ.get('SPACE','0.056'))
PVSP = int(os.environ.get('PVSP','4'))
EXPSP = int(os.environ.get('EXPSP','2'))
NOWQ = int(os.environ.get('NOWQ','0'))
NOXR = int(os.environ.get('NOXR','0'))
NOPERM = int(os.environ.get('NOPERM','0'))
KFLAGS = os.environ.get('KFLAGS',' nt')
OSTF = os.environ.get('OSTF','')
OLDF = os.environ.get('OLDF','')
WOF = os.environ.get('WOF','')
WQF = os.environ.get('WQF','')
XF = os.environ.get('XF','')
LDS_MX = 147456
LDS_SUM = LDS_MX + 2304
LDS_OST = LDS_SUM + 2304
LDS1 = LDS_OST + 8192

def add_stamp(k, sb=64):
    k.nst = 0
    def stamp():
        if not DBG: return
        k.raw("s_memtime s[62:63]")
        k.raw("s_waitcnt lgkmcnt(0)")
        k.raw(f"s_mov_b32 s{sb+k.nst}, s62")
        k.nst += 1
    k.stamp = stamp
    def dump(waveS, base):
        if not DBG: return
        k.raw(f"s_cmp_lg_u32 s2, {DBGWG}")
        k.raw(f"s_cbranch_scc1 L_nodump{base}")
        k.raw("s_load_dwordx2 s[60:61], s[0:1], 48")
        k.raw("s_waitcnt lgkmcnt(0)")
        k.raw("s_mov_b32 s62, 256")
        k.raw("s_mov_b32 s63, 0x20000")
        k.raw(f"v_mov_b32 v1, 0")
        k.raw(f"s_cmp_lg_u32 {waveS}, 0")
        k.raw(f"s_cbranch_scc1 L_nodump{base}")
        for i in range(k.nst):
            k.raw(f"s_sub_u32 s58, s{sb+i}, s{sb}")
            k.raw(f"v_mov_b32 v2, s58")
            k.raw(f"buffer_store_dword v2, v1, s[60:63], 0 offen offset:{(base+i)*4}")
        k.raw("s_waitcnt vmcnt(0)")
        k.label(f"L_nodump{base}")
    k.dump = dump

def gen_attn():
    k = Asm()
    add_stamp(k)
    e = k.raw
    k.label("standalone__mha_block_cached__near_ridge_kernel")
    e("s_cmp_ge_u32 s2, 256")
    e("s_cbranch_scc1 L_attn_end")
    k.stamp()
    e("s_load_dwordx8 s[36:43], s[0:1], 0")
    e("s_load_dwordx2 s[44:45], s[0:1], 56")
    e("s_load_dwordx2 s[88:89], s[0:1], 32")
    e("v_and_b32 v1, 63, v0")
    e("v_and_b32 v2, 15, v0")
    e("v_lshrrev_b32 v3, 4, v1")
    e("v_lshrrev_b32 v27, 6, v0")
    e("s_lshr_b32 s6, s2, 3")
    e("s_and_b32 s7, s2, 7")
    e("s_and_b32 s4, s7, 3")
    e("s_lshl_b32 s4, s4, 2")
    e("s_and_b32 s3, s6, 3")
    e("s_add_u32 s4, s4, s3")
    e("s_lshr_b32 s3, s7, 2")
    e("s_lshl_b32 s3, s3, 3")
    e("s_lshr_b32 s6, s6, 2")
    e("s_add_u32 s3, s3, s6")
    e("s_lshl_b32 s7, s3, 4")
    e("s_add_u32 s7, s7, s4")
    e("v_readfirstlane_b32 s5, v27")
    e("s_mov_b32 s33, " + f32hex(C1))
    e("s_mov_b32 s34, 0x05040100")
    e("s_mov_b32 s35, 0x07060302")
    e("v_lshrrev_b32 v28, 1, v3")
    e("v_xor_b32 v29, v3, v28")
    e("v_and_b32 v29, 1, v29")
    e("v_lshl_or_b32 v29, v29, 1, v28")
    e("v_and_b32 v30, 3, v1")
    e("v_xor_b32 v29, v29, v30")
    e("v_lshrrev_b32 v30, 2, v1")
    e("v_mul_u32_u24 v4, 896, v30")
    e("v_lshl_add_u32 v4, v29, 4, v4")
    e("v_lshl_add_u32 v4, v27, 6, v4")
    e("v_lshrrev_b32 v30, 2, v2")
    e("v_lshrrev_b32 v28, 1, v30")
    e("v_xor_b32 v29, v30, v28")
    e("v_and_b32 v29, 1, v29")
    e("v_lshl_or_b32 v29, v29, 1, v28")
    e("v_xor_b32 v29, v29, v3")
    e("v_lshlrev_b32 v5, 6, v2")
    e("v_lshl_add_u32 v5, v29, 4, v5")
    e("v_add_u32 v6, 0x10000, v5")
    e("v_lshlrev_b32 v7, 3, v2")
    e("v_lshl_add_u32 v7, v3, 16, v7")
    e("v_lshrrev_b32 v28, 1, v3")
    e("v_xor_b32 v29, v3, v28")
    e("v_and_b32 v29, 1, v29")
    e("v_lshl_or_b32 v29, v29, 1, v28")
    e("v_and_b32 v30, 3, v1")
    e("v_xor_b32 v29, v29, v30")
    e("v_lshrrev_b32 v30, 2, v1")
    e("v_lshlrev_b32 v8, 9, v30")
    e("v_lshl_add_u32 v8, v29, 4, v8")
    e("v_lshlrev_b32 v0, 4, v1")
    e("v_lshl_add_u32 v0, v27, 12, v0")
    e(f"v_add_u32 v0, {73728}, v0")
    e("v_lshlrev_b32 v9, 3, v2")
    e("v_lshl_add_u32 v9, v3, 12, v9")
    e("v_xor_b32 v28, v3, v2")
    e("v_lshlrev_b32 v28, 4, v28")
    e("v_lshl_add_u32 v18, v2, 9, v28")
    e("v_lshl_add_u32 v23, v2, 10, v28")
    e("v_lshrrev_b32 v28, 1, v3")
    e("v_xor_b32 v28, v28, v2")
    e("v_lshlrev_b32 v28, 4, v28")
    e("v_lshl_add_u32 v21, v2, 10, v28")
    e("v_lshl_add_u32 v21, v27, 8, v21")
    e("v_and_b32 v28, 1, v3")
    e("v_lshl_add_u32 v21, v28, 3, v21")
    e("s_lshl_b32 s28, s5, 10")
    e("s_lshl_b32 s29, s4, 9")
    e("s_lshl_b32 s6, s5, 7")
    e("s_add_u32 s29, s29, s6")
    e("s_lshl_b32 s30, s5, 16")
    e("s_mov_b32 s31, s6")
    e("s_mul_i32 s32, s3, 1179648")
    e("s_lshl_b32 s6, s4, 13")
    e("s_add_u32 s32, s32, s6")
    e("s_lshl_b32 s6, s5, 11")
    e("s_add_u32 s32, s32, s6")
    for t in range(8):
        e(f"s_add_u32 s{48+t}, s30, {t*8192}")
    e("s_waitcnt lgkmcnt(0)")
    e("s_mul_i32 s6, s3, 129024")
    e("s_add_u32 s8, s36, s6")
    e("s_addc_u32 s9, s37, 0")
    e("s_mov_b32 s10, 129024")
    e("s_mov_b32 s11, 0x20000")
    e("s_mov_b32 s12, s42")
    e("s_mov_b32 s13, s43")
    e("s_mov_b32 s14, 3670016")
    e("s_mov_b32 s15, 0x20000")
    e("s_lshl_b32 s6, s7, 18")
    e("s_add_u32 s16, s38, s6")
    e("s_addc_u32 s17, s39, 0")
    e("s_mov_b32 s18, 262144")
    e("s_mov_b32 s19, 0x20000")
    e("s_add_u32 s20, s40, s6")
    e("s_addc_u32 s21, s41, 0")
    e("s_mov_b32 s22, 262144")
    e("s_mov_b32 s23, 0x20000")
    e("s_mov_b32 s24, s44")
    e("s_mov_b32 s25, s45")
    e("s_mov_b32 s26, 18874368")
    e("s_mov_b32 s27, 0x20000")
    e("s_mov_b32 s90, 3670016")
    e("s_mov_b32 s91, 0x20000")
    e("s_add_u32 s84, s44, 33554432")
    e("s_addc_u32 s85, s45, 0")
    e("s_mov_b32 s86, 3670016")
    e("s_mov_b32 s87, 0x20000")
    SX, SWQ, SK, SV, SO = "s[8:11]", "s[12:15]", "s[16:19]", "s[20:23]", "s[24:27]"

    def dma(sp, m):
        e(f"s_add_u32 m0, s28, {m*14336 + sp*4096}")
        e(f"s_mov_b32 s46, {m*14336 + sp*256}")
        return k.vdma(V(4), SX, "s46", flags=XF)
    e("s_cmp_ge_u32 s5, 2")
    e("s_cbranch_scc1 L_skipdma")
    for m in range(9):
        dma(3, m)
    k.label("L_skipdma")

    NW = 4
    WRAW = lambda st, j: V(32 + st*16 + j*2, 2)
    WFR = lambda st, t: V(96 + st*16 + t*4, 4)
    FR = lambda m: V(176 + m*4, 4)
    ACCQ = lambda m, t: A((m*4+t)*4, 4)
    VB_A = [V(128 + 4*i, 4) for i in range(12)]
    VB_B = [V(212 + 4*i, 4) for i in range(8)]
    AR = [A(144 + 4*i, 4) for i in range(28)]
    init_slots = VB_A + VB_B + AR
    stmp = [46, 47, 58, 59]
    sidx = [0]
    def stemp():
        sidx[0] = (sidx[0] + 1) % len(stmp)
        return stmp[sidx[0]]

    wq_tok = {}
    def wq_loads(s):
        fl = []
        for j in range(8):
            def f(j=j):
                st = stemp()
                e(f"s_add_u32 s{st}, s29, {(32*s+j)*8192}")
                wq_tok[s] = k.vload("buffer_load_dwordx2", WRAW(s % NW, j), V(7), SWQ, f"s{st}", flags=WQF)
            fl.append(f)
        return fl
    def issue_wq(s):
        for f in wq_loads(s): f()
    mem = []
    k_tok = {}
    k_slot = {}
    k_next = [0]
    korder = [(2*sp + ee, t) for sp in range(4) for t in range(4, 8) for ee in range(2)] + \
             [(2*sp + ee, t) for sp in range(4) for t in range(0, 4) for ee in range(2)]
    def issue_k(slot):
        s_, t = korder[k_next[0]]; k_next[0] += 1
        i = s_*8 + t
        k_slot[i] = slot
        k_tok[i] = k.vload("buffer_load_dwordx4", slot, V(8), SK, f"s{48+t}", offset=s_*64, flags=KFLAGS)
    kp_tok = {}
    ksc = [0]
    def kperm(i):
        while i not in k_tok: mem.pop(0)()
        k.wait_vm(k_tok[i])
        sl = k_slot[i]
        off = (ksc[0] % 4) * 1024; ksc[0] += 1
        k.dswrite("ds_write_b128", V(0), sl, off)
        kp_tok[i] = k.dsread("ds_read_b128", sl, V(5), off)
    v_tok = {}
    v_reg = {}
    v_cnt = {}
    def v_loads(u, regs):
        v_reg[u] = regs
        v_cnt[u] = 0
        fl = []
        for j in range(8):
            def f(j=j):
                st = stemp()
                e(f"s_add_u32 s{st}, s31, {u*16384}")
                v_tok[u] = k.vload("buffer_load_dwordx2", regs[j], V(9), SV, f"s{st}", offset=j*512, flags=KFLAGS)
                v_cnt[u] += 1
            f.kb = 0.5
            fl.append(f)
        return fl
    def issue_v(u, regs):
        for f in v_loads(u, regs): f()

    def perm_fill(raws, out):
        fl = []
        for t in range(4):
            for i in range(4):
                hi = raws[2*i+1]; lo = raws[2*i]
                def f(t=t, i=i, hi=hi, lo=lo):
                    o = out(t)
                    k.valu("v_perm_b32", V(o[1]+i), V(hi[1] + (t >> 1)), V(lo[1] + (t >> 1)), "s35" if (t & 1) else "s34")
                fl.append(f)
        return fl

    xtok = {}
    ring_next = 0
    for m in range(9): xtok[0] = dma(0, m)
    issue_wq(0); issue_wq(1); issue_wq(2)
    for _ in range(K0):
        issue_k(init_slots[ring_next]); ring_next += 1
    k.wait_vm(xtok[0])
    k.barrier()
    k.stamp()

    def xread(m, s):
        off = (m*14 + s) * 1024
        if off < 65536: return k.dsread("ds_read_b128", FR(m), V(5), off)
        return k.dsread("ds_read_b128", FR(m), V(6), off - 65536)
    fr_tok = {}
    for m in range(9): fr_tok[m] = xread(m, 0)
    k.wait_vm(wq_tok[0])
    for f in perm_fill([WRAW(0, j) for j in range(8)], lambda t: WFR(0, t)): f()
    mem = []
    def dma_f(sp, m):
        def f(): xtok[sp] = dma(sp, m)
        return f
    def k_f():
        nonlocal ring_next
        if ring_next < len(init_slots):
            issue_k(init_slots[ring_next]); ring_next += 1
    mem += [dma_f(1, m) for m in range(9)] + [dma_f(2, m) for m in range(9)]
    for s in range(14):
        if s in (3, 7):
            k.wait_vm(xtok[(s+1)//4])
            k.barrier()
        if s + 3 < 14: mem = wq_loads(s+3) + mem
        mem += [k_f] * KRATE
        fill = []
        if s + 1 < 14:
            fill.append(lambda s=s: k.wait_vm(wq_tok[s+1]))
            fill += perm_fill([WRAW((s+1) % NW, j) for j in range(8)], lambda t, s=s: WFR((s+1) % 2, t))
        n = 0
        for m in range(9):
            k.wait_lg(fr_tok[m])
            for t in range(4):
                k.mfma(ACCQ(m, t), FR(m), WFR(s % 2, t), ACCQ(m, t) if s else 0)
                if n % 2 == 0 and mem: mem.pop(0)()
                if n >= 12 and fill: fill.pop(0)()
                n += 1
            if s + 1 < 14: fr_tok[m] = xread(m, s+1)
        while fill: fill.pop(0)()
    while mem: mem.pop(0)()
    k.stamp()
    while ring_next < len(init_slots):
        issue_k(init_slots[ring_next]); ring_next += 1
    k.stamp()
    k.barrier()
    k.valu("v_and_b32", V(28), 1, V(27))
    k.valu("v_lshlrev_b32", V(28), 3, V(28))
    k.valu("v_lshrrev_b32", V(29), 1, V(2))
    k.valu("v_add_u32", V(28), V(28), V(29))
    k.valu("v_lshrrev_b32", V(29), 1, V(27))
    k.valu("v_lshlrev_b32", V(29), 8, V(29))
    k.valu("v_and_b32", V(30), 1, V(2))
    k.valu("v_lshl_add_u32", V(29), V(30), 3, V(29))
    for r in range(4):
        k.valu("v_lshl_add_u32", V(30), V(3), 2, r)
        k.valu("v_xor_b32", V(31), V(28), V(30))
        k.valu("v_lshl_add_u32", V(10+r), V(31), 4, V(29))
        k.valu("v_lshl_add_u32", V(10+r), V(30), 9, V(10+r))
        k.valu("v_add_u32", V(14+r), 32768, V(10+r))
    tb = 244
    for m in range(9):
        for r in range(4):
            T = tb + ((m*4 + r) % 2) * 6
            for t in range(4):
                k.valu("v_accvgpr_read_b32", V(T+t), A((m*4+t)*4 + r))
            k.valu("v_cvt_pk_bf16_f32", V(T+4), V(T), V(T+1))
            k.valu("v_cvt_pk_bf16_f32", V(T+5), V(T+2), V(T+3))
            if m < 4: k.dswrite("ds_write_b64", V(10+r), V(T+4, 2), m*8192)
            else: k.dswrite("ds_write_b64", V(14+r), V(T+4, 2), (m-4)*8192)
    k.wait_lg_all()
    k.barrier()
    k.stamp()

    def ACCS(t, m):
        if t < 4: return V(32 + (m*4 + t)*4, 4)
        return A((m*4 + (t-4))*4, 4)
    def qaddr(s):
        k.valu("v_xor_b32", V(19), (s & 3) << 6, V(18))
        k.valu("v_add_u32", V(20), 65536, V(19))
    def qread(m, s):
        off = m*8192 + (s >> 2)*256
        if off < 65536: return k.dsread("ds_read_b128", FR(m), V(19), off)
        return k.dsread("ds_read_b128", FR(m), V(20), off - 65536)
    k.valu("v_lshl_add_u32", V(5), V(27), 12, V(5))
    k.valu("v_add_u32", V(5), 73728, V(5))
    seq = [(p, s_) for p in (0, 1) for s_ in range(8)]
    tiles = lambda p: range(4, 8) if p == 0 else range(0, 4)
    qaddr(0)
    for t in tiles(0): kperm(t)
    for m in range(9): fr_tok[m] = qread(m, 0)
    v_next = 0
    vfree = []
    mem = []
    kq = k_next[0]
    k.valu("v_mul_u32_u24", V(28), 28, V(27))
    k.valu("v_add_u32", V(28), V(28), V(1))
    k.valu("v_cmp_le_u32", "vcc", 56, V(28))
    k.raw("s_nop 1")
    k.valu("v_cndmask_b32", V(29), 0, 1, "vcc")
    k.valu("v_mul_u32_u24", V(30), 56, V(29))
    k.valu("v_sub_u32", V(28), V(28), V(30))
    k.valu("v_mul_u32_u24", V(30), 7168, V(29))
    k.valu("v_lshl_add_u32", V(96), V(28), 4, V(30))
    e("s_mul_i32 s92, s2, 14336")
    e("s_add_u32 s93, s92, 3584")
    k.valu("v_lshrrev_b32", V(30), 3, V(28))
    k.valu("v_lshlrev_b32", V(97), 12, V(30))
    k.valu("v_and_b32", V(30), 7, V(28))
    k.valu("v_lshl_add_u32", V(97), V(30), 5, V(97))
    k.valu("v_lshl_add_u32", V(97), V(29), 8, V(97))
    e("s_lshr_b32 s94, s2, 1")
    e("s_mul_i32 s94, s94, 28672")
    e("s_and_b32 s95, s2, 1")
    e("s_lshl_b32 s95, s95, 9")
    e("s_add_u32 s94, s94, s95")
    wo_tok = [None]
    def wo_load(j):
        def f():
            e("s_mov_b64 exec, 0xfffffff")
            wo_tok[0] = k.vload("buffer_load_dwordx4", V(32 + 4*j, 4), V(96), "s[88:91]", "s92" if j < 4 else "s93", offset=(j & 3)*896)
            e("s_mov_b64 exec, -1")
        return f
    wl = [wo_load(j) for j in range(8)]
    for f in wl: f.kb = 0.1
    mem += wl
    def wo_perm(e_, i2):
        return lambda: k.valu("v_perm_b32", V(64 + 4*e_ + i2), V(32 + 4*(2*i2+1) + (e_ >> 1)), V(32 + 4*(2*i2) + (e_ >> 1)), "s35" if (e_ & 1) else "s34")
    def wo_store(e_):
        def f():
            e("s_mov_b64 exec, 0xfffffff")
            k.vstore("buffer_store_dwordx4", V(64 + 4*e_, 4), V(97), "s[84:87]", "s94", offset=(e_ & 3)*1024 + (e_ >> 2)*16)
            e("s_mov_b64 exec, -1")
        return f
    wfill = []
    budget = [0.0]
    for idx, (p, s) in enumerate(seq):
        nxt = seq[idx+1] if idx + 1 < len(seq) else None
        if nxt: qaddr(nxt[1])
        if idx == 5:
            wfill = [lambda: k.wait_vm(wo_tok[0])] + [wo_perm(e_, i2) for e_ in range(8) for i2 in range(4)]
        if idx == 8:
            def mk(m):
                fl = []
                for half in range(2):
                    for q in range(8):
                        t = 4 + half*2 + (q >> 2); r = q & 3
                        fl.append(lambda t=t, r=r, q=q, m=m: k.valu("v_accvgpr_read_b32", V(10+q), A(ACCS(t, m)[1] + r)))
                    if half == 0:
                        fl.append(lambda m=m: k.valu("v_max3_f32", V(244+m), V(10), V(11), V(12)))
                    else:
                        fl.append(lambda m=m: k.valu("v_max3_f32", V(244+m), V(10), V(11), V(244+m)))
                        fl.append(lambda m=m: k.valu("v_max_f32", V(244+m), V(12), V(244+m)))
                    fl.append(lambda m=m: k.valu("v_max3_f32", V(244+m), V(13), V(14), V(244+m)))
                    fl.append(lambda m=m: k.valu("v_max3_f32", V(244+m), V(15), V(16), V(244+m)))
                    fl.append(lambda m=m: k.valu("v_max_f32", V(244+m), V(17), V(244+m)))
                return fl
            for m_ in range(9): wfill += mk(m_)
        if idx == 6:
            ws_ = [wo_store(e_) for e_ in range(8)]
            for f in ws_: f.kb = 0.1
            mem = ws_ + mem
        n = 0
        for m in range(9):
            k.wait_lg(fr_tok[m])
            for t in tiles(p):
                i = s*8 + t
                k.wait_lg(kp_tok[i])
                k.mfma(ACCS(t, m), k_slot[i], FR(m), ACCS(t, m) if s else 0)
                budget[0] += SPACE
                while mem and budget[0] >= getattr(mem[0], 'kb', 1.0):
                    budget[0] -= getattr(mem[0], 'kb', 1.0); mem.pop(0)()
                if wfill: wfill.pop(0)()
                n += 1
            if nxt:
                fr_tok[m] = qread(m, nxt[1])
                if 4 <= m < 8: kperm(nxt[1]*8 + list(tiles(nxt[0]))[m-4])
        for t in tiles(p):
            sl = k_slot[s*8 + t]
            if sl in VB_A: continue
            if kq < 64:
                mem.append(lambda sl=sl: issue_k(sl)); kq += 1
            elif sl in AR: vfree.append(sl)
        while len(vfree) >= 4 and v_next < 7:
            sls = vfree[:4]; vfree = vfree[4:]
            regs = []
            for sl in sls:
                regs += [A(sl[1], 2), A(sl[1] + 2, 2)]
            mem += v_loads(v_next, regs); v_next += 1
    assert v_next == 7, v_next
    while wfill: wfill.pop(0)()

    k.stamp()
    NEGM = lambda m: V(212 + 2*m)
    PSUM = lambda m: V(176 + 2*m, 2)
    e("s_mov_b32 s80, s33")
    e("s_mov_b32 s81, s33")
    k.valu("v_lshlrev_b32", V(28), 4, V(2))
    k.valu("v_lshl_add_u32", V(28), V(27), 2, V(28))
    k.valu("v_add_u32", V(28), LDS_MX, V(28))
    k.valu("v_lshlrev_b32", V(29), 4, V(2))
    k.valu("v_add_u32", V(29), LDS_MX, V(29))
    for m in range(9):
        mx = NEGM(m); m2 = V(213 + 2*m)
        vals = []
        for t in range(4):
            b_ = ACCS(t, m)[1]
            vals += [V(b_+r) for r in range(4)]
        k.valu("v_max3_f32", mx, vals[0], vals[1], V(244 + m))
        k.valu("v_max3_f32", m2, vals[2], vals[3], vals[4])
        k.valu("v_max3_f32", mx, vals[5], vals[6], mx)
        k.valu("v_max3_f32", m2, vals[7], vals[8], m2)
        k.valu("v_max3_f32", mx, vals[9], vals[10], mx)
        k.valu("v_max3_f32", m2, vals[11], vals[12], m2)
        k.valu("v_max3_f32", mx, vals[13], vals[14], mx)
        k.valu("v_max3_f32", mx, vals[15], m2, mx)
    for m in range(9):
        mx = NEGM(m); tm = V(213 + 2*m)
        k.valu("v_mov_b32", tm, mx)
    for m in range(9):
        mx = NEGM(m); tm = V(213 + 2*m)
        k.valu("v_permlane32_swap_b32", tm, mx, permlane=True, extra_w=(mx,))
    for m in range(9):
        mx = NEGM(m); tm = V(213 + 2*m)
        k.valu("v_max_f32", mx, tm, mx)
    for m in range(9):
        mx = NEGM(m); tm = V(213 + 2*m)
        k.valu("v_mov_b32", tm, mx)
    for m in range(9):
        mx = NEGM(m); tm = V(213 + 2*m)
        k.valu("v_permlane16_swap_b32", tm, mx, permlane=True, extra_w=(mx,))
    for m in range(9):
        mx = NEGM(m); tm = V(213 + 2*m)
        k.valu("v_max_f32", mx, tm, mx)
        k.dswrite("ds_write_b32", V(28), mx, m*256)
        if mem: mem.pop(0)()
    k.wait_lg_all()
    k.barrier()
    k.stamp()
    toks = []
    for m in range(9):
        toks.append(k.dsread("ds_read_b128", V(176 + m*4, 4), V(29), m*256))
    k.valu("v_mov_b32", V(231), "s33")
    for m in range(9):
        k.wait_lg(toks[m])
        T = 176 + m*4
        k.valu("v_max3_f32", NEGM(m), V(T), V(T+1), V(T+2))
        k.valu("v_max_f32", NEGM(m), V(T+3), NEGM(m))
    for m in range(9):
        k.valu("v_mul_f32", NEGM(m), V(231), NEGM(m))
    for m in range(9):
        k.valu("v_sub_f32", NEGM(m), 0, NEGM(m))
    tl = [(m, t) for m in range(9) for t in range(8)]
    def sregs(n):
        m, t = tl[n]
        if t < 4: return ACCS(t, m)[1]
        return 196 + (n % 4)*4
    def stageA(n):
        m, t = tl[n]; S = sregs(n)
        if t >= 4:
            ab = ACCS(t, m)[1]
            for r in range(4):
                k.valu("v_accvgpr_read_b32", V(S+r), A(ab+r))
        for h_ in range(2):
            k.valu("v_pk_fma_f32", V(S+2*h_, 2), V(S+2*h_, 2), "s[80:81]", V(NEGM(m)[1], 2), mods=" op_sel_hi:[1,1,0]")
        for r in range(4):
            k.valu("v_exp_f32", V(S+r), V(S+r), trans=True)
    def stageB(n):
        m, t = tl[n]; S = sregs(n)
        if t == 0:
            if m == 0: k.valu("v_mov_b32", V(22), V(21))
            else: k.valu("v_add_u32", V(22), m*16384, V(21))
        P = 232 + (n % 4)*2
        AD = 240 + (n % 4)
        k.valu("v_xor_b32", V(AD), t << 5, V(22))
        k.valu("v_cvt_pk_bf16_f32", V(P), V(S), V(S+1))
        k.valu("v_cvt_pk_bf16_f32", V(P+1), V(S+2), V(S+3))
        if t == 0:
            k.valu("v_pk_add_f32", PSUM(m), V(S, 2), V(S+2, 2))
        else:
            k.valu("v_pk_add_f32", PSUM(m), V(S, 2), PSUM(m))
            k.valu("v_pk_add_f32", PSUM(m), V(S+2, 2), PSUM(m))
        k.dswrite("ds_write_b64", V(AD), V(P, 2))
        if mem and n % EXPSP == 0: mem.pop(0)()
        if t == 7:
            mem.extend(v_loads(7 + m, [V(32 + m*16 + 2*j, 2) for j in range(8)]))
    stageA(0)
    for n in range(len(tl)):
        if n + 1 < len(tl): stageA(n+1)
        stageB(n)
    k.valu("v_mul_u32_u24", V(28), 576, V(27))
    k.valu("v_lshl_add_u32", V(28), V(2), 2, V(28))
    k.valu("v_add_u32", V(28), LDS_SUM, V(28))
    for m in range(9):
        b_ = PSUM(m)[1]
        k.valu("v_add_f32", V(b_), V(b_), V(b_+1))
    for m in range(9):
        b_ = PSUM(m)[1]
        k.valu("v_mov_b32", V(b_+1), V(b_))
    for m in range(9):
        b_ = PSUM(m)[1]
        k.valu("v_permlane32_swap_b32", V(b_+1), V(b_), permlane=True, extra_w=(V(b_),))
    for m in range(9):
        b_ = PSUM(m)[1]
        k.valu("v_add_f32", V(b_), V(b_+1), V(b_))
    for m in range(9):
        b_ = PSUM(m)[1]
        k.valu("v_mov_b32", V(b_+1), V(b_))
    for m in range(9):
        b_ = PSUM(m)[1]
        k.valu("v_permlane16_swap_b32", V(b_+1), V(b_), permlane=True, extra_w=(V(b_),))
    for m in range(9):
        b_ = PSUM(m)[1]
        k.valu("v_add_f32", V(b_), V(b_+1), V(b_))
        k.dswrite("ds_write_b32", V(28), V(b_), m*64)
    k.wait_lg_all()
    k.barrier()
    k.stamp()

    ACCO = lambda m, t: A((m*4+t)*4, 4)
    VFR = lambda st, t: V(212 + st*16 + t*4, 4)
    def paddr(u):
        k.valu("v_xor_b32", V(24), (u & 3) << 6, V(23))
        k.valu("v_add_u32", V(25), 65536, V(24))
        k.valu("v_add_u32", V(26), 131072, V(24))
    def pread(m, u):
        off = m*16384 + (u >> 2)*256
        return k.dsread("ds_read_b128", FR(m), V(24 + off // 65536), off % 65536)
    def vprep(u):
        fl = [lambda: k.wait_vm(v_tok[u])]
        regs = v_reg[u]
        if regs[0][0] == 'a':
            tmp = [244, 246, 248, 250, 252, 254, 10, 12]
            for j in range(8):
                for q in range(2):
                    fl.append(lambda j=j, q=q: k.valu("v_accvgpr_read_b32", V(tmp[j]+q), A(regs[j][1]+q)))
            raws = [V(tmp[j], 2) for j in range(8)]
        else:
            raws = regs
        fl += perm_fill(raws, lambda t: VFR(u % 2, t))
        return fl
    paddr(0)
    for m in range(9): fr_tok[m] = pread(m, 0)
    while v_cnt[0] < 8: mem.pop(0)()
    for f in vprep(0): f()
    for u in range(16):
        fill = []
        if u + 1 < 16:
            paddr(u+1)
            while v_cnt[u+1] < 8: mem.pop(0)()
            fill = vprep(u+1)
        n = 0
        for m in range(9):
            k.wait_lg(fr_tok[m])
            for t in range(4):
                k.mfma(ACCO(m, t), FR(m), VFR(u % 2, t), ACCO(m, t) if u else 0)
                if fill: fill.pop(0)()
                if n % PVSP == PVSP-1 and mem: mem.pop(0)()
                n += 1
            if u + 1 < 16: fr_tok[m] = pread(m, u+1)
        while fill: fill.pop(0)()
    assert not mem

    k.stamp()
    k.valu("v_lshlrev_b32", V(28), 4, V(3))
    k.valu("v_add_u32", V(28), LDS_SUM, V(28))
    for m in range(9):
        for w in range(4):
            k.dsread("ds_read_b128", V(32 + (m*4+w)*4, 4), V(28), w*576 + m*64)
    k.valu("v_lshrrev_b32", V(29), 1, V(2))
    k.valu("v_lshlrev_b32", V(30), 2, V(3))
    k.valu("v_xor_b32", V(30), V(30), V(29))
    k.valu("v_lshlrev_b32", V(30), 4, V(30))
    k.valu("v_lshl_add_u32", V(30), V(29), 8, V(30))
    k.valu("v_and_b32", V(29), 1, V(2))
    k.valu("v_lshl_add_u32", V(30), V(29), 3, V(30))
    k.valu("v_lshl_add_u32", V(30), V(27), 11, V(30))
    k.valu("v_add_u32", V(10), LDS_OST, V(30))
    for r in range(1, 4):
        k.valu("v_xor_b32", V(10+r), r << 4, V(10))
    k.valu("v_xor_b32", V(30), V(2), V(3))
    k.valu("v_lshlrev_b32", V(30), 4, V(30))
    k.valu("v_lshl_add_u32", V(30), V(3), 8, V(30))
    k.valu("v_lshl_add_u32", V(30), V(27), 11, V(30))
    k.valu("v_add_u32", V(14), LDS_OST, V(30))
    k.valu("v_xor_b32", V(15), 64, V(14))
    k.valu("v_lshlrev_b32", V(16), 4, V(1))
    k.wait_lg_all()
    for m in range(9):
        b = 32 + m*16
        for r in range(4):
            k.valu("v_add_f32", V(b+r), V(b+r), V(b+4+r))
            k.valu("v_add_f32", V(b+8+r), V(b+8+r), V(b+12+r))
        for r in range(4):
            k.valu("v_add_f32", V(b+r), V(b+r), V(b+8+r))
        for r in range(4):
            k.valu("v_rcp_f32", V(b+r), V(b+r), trans=True)
    pend = None
    for m in range(9):
        b = 32 + m*16
        for r in range(4):
            T = 176 + ((m*4 + r) % 4) * 6
            for t in range(4):
                k.valu("v_accvgpr_read_b32", V(T+t), A((m*4+t)*4 + r))
            for t in range(4):
                k.valu("v_mul_f32", V(T+t), V(T+t), V(b+r))
            k.valu("v_cvt_pk_bf16_f32", V(T+4), V(T), V(T+1))
            k.valu("v_cvt_pk_bf16_f32", V(T+5), V(T+2), V(T+3))
            k.dswrite("ds_write_b64", V(10+r), V(T+4, 2))
        RB = 212 + (m % 2)*8
        t0 = k.dsread("ds_read_b128", V(RB, 4), V(14))
        t1 = k.dsread("ds_read_b128", V(RB+4, 4), V(15), 1024)
        if pend is not None:
            pm, pRB, pt1 = pend
            k.wait_lg(pt1)
            st = stemp()
            e(f"s_add_u32 s{st}, s32, {pm*131072}")
            k.vstore("buffer_store_dwordx4", V(pRB, 4), V(16), SO, f"s{st}", flags=OSTF)
            k.vstore("buffer_store_dwordx4", V(pRB+4, 4), V(16), SO, f"s{st}", offset=1024, flags=OSTF)
        pend = (m, RB, t1)
    pm, pRB, pt1 = pend
    k.wait_lg(pt1)
    st = stemp()
    e(f"s_add_u32 s{st}, s32, {pm*131072}")
    k.vstore("buffer_store_dwordx4", V(pRB, 4), V(16), SO, f"s{st}", flags=OSTF)
    k.vstore("buffer_store_dwordx4", V(pRB+4, 4), V(16), SO, f"s{st}", offset=1024, flags=OSTF)
    k.stamp()
    k.wait_vm_all()
    k.stamp()
    k.dump("s5", 0)
    k.label("L_attn_end")
    e("s_endpgm")
    return k

def gen_oproj():
    k = Asm()
    add_stamp(k, 84)
    e = k.raw
    k.label("oproj_kernel")
    e("s_cmp_ge_u32 s2, 256")
    e("s_cbranch_scc1 L_op_end")
    e("s_and_b32 s3, s2, 7")
    e("s_lshl_b32 s3, s3, 5")
    e("s_lshr_b32 s4, s2, 3")
    e("s_add_u32 s3, s3, s4")
    e("s_cmp_ge_u32 s3, 252")
    e("s_cbranch_scc1 L_op_end")
    k.stamp()
    e("s_load_dwordx4 s[36:39], s[0:1], 32")
    e("s_load_dwordx2 s[40:41], s[0:1], 56")
    e("s_mul_i32 s4, s3, 9363")
    e("s_lshr_b32 s4, s4, 16")
    e("s_mul_i32 s5, s4, 7")
    e("s_sub_u32 s5, s3, s5")
    e("v_and_b32 v1, 63, v0")
    e("v_and_b32 v2, 15, v0")
    e("v_lshrrev_b32 v3, 4, v1")
    e("v_lshrrev_b32 v4, 6, v0")
    e("s_mov_b32 s34, 0x05040100")
    e("s_mov_b32 s35, 0x07060302")
    e("v_lshlrev_b32 v5, 4, v1")
    e("v_lshl_add_u32 v5, v4, 14, v5")
    e("s_mov_b32 s6, 458752")
    e("v_mul_lo_u32 v6, s6, v4")
    e("v_lshl_add_u32 v6, v1, 4, v6")
    e("s_lshl_b32 s6, s4, 19")
    for m in range(4):
        for q in range(4):
            e(f"s_add_u32 s{64+m*4+q}, s6, {m*131072 + q*4096}")
    e("s_lshl_b32 s7, s5, 7")
    e("s_lshl_b32 s33, s5, 12")
    e("s_waitcnt lgkmcnt(0)")
    e("s_mov_b32 s8, s40"); e("s_mov_b32 s9, s41"); e("s_mov_b32 s10, 18874368"); e("s_mov_b32 s11, 0x20000")
    e("s_add_u32 s12, s40, 33554432"); e("s_addc_u32 s13, s41, 0"); e("s_mov_b32 s14, 3670016"); e("s_mov_b32 s15, 0x20000")
    e("s_mov_b32 s16, s38"); e("s_mov_b32 s17, s39"); e("s_mov_b32 s18, 2064384"); e("s_mov_b32 s19, 0x20000")
    SA, SB, SOUT = "s[8:11]", "s[12:15]", "s[16:19]"
    NS = 5
    AFR = lambda st, m: V(96 + st*32 + m*4, 4)
    BRAW = lambda st, j: V(96 + st*32 + 16 + j*2, 2)
    BFR = lambda st, t: V(16 + st*8*0 + t*4, 4) if False else V(16 + (st % 1)*16 + t*4, 4)
    ACC = lambda m, t: V(32 + (m*4+t)*4, 4)
    tokA = {}; tokB = {}
    sidx = [0]
    def stemp():
        sidx[0] = (sidx[0] + 1) % 4
        return 52 + sidx[0]
    BF = lambda st, t: V(96 + st*32 + 16 + t*4, 4)
    def loads(s):
        st = s % NS
        fl = []
        def fb(t):
            def f():
                if t == 0:
                    loads.sb = stemp()
                    e(f"s_add_u32 s{loads.sb}, s33, {s*28672}")
                tokB[s] = k.vload("buffer_load_dwordx4", BF(st, t), V(6), SB, f"s{loads.sb}", offset=t*1024)
            return f
        def fa(m):
            def f():
                tokA[s] = k.vload("buffer_load_dwordx4", AFR(st, m), V(5), SA, f"s{64+m*4+(s>>2)}", offset=(s&3)*1024, flags=OLDF)
            return f
        return [fb(0), fa(0), fb(1), fa(1), fb(2), fa(2), fb(3), fa(3)]
    for s in range(NS):
        for f in loads(s): f()
    k.stamp()
    for s in range(16):
        st = s % NS
        k.wait_vm(tokA[s])
        for m in range(4):
            for t in range(4):
                k.mfma(ACC(m, t), AFR(st, m), BF(st, t), ACC(m, t) if s else 0)
        if s + NS < 16:
            for f in loads(s + NS): f()
    k.stamp()
    k.valu("v_lshlrev_b32", V(8), 4, V(1))
    k.valu("v_lshl_add_u32", V(8), V(4), 14, V(8))
    for m in range(4):
        for t in range(4):
            k.dswrite("ds_write_b128", V(8), ACC(m, t), (m*4+t)*1024)
    k.wait_lg_all()
    k.barrier()
    k.valu("v_lshrrev_b32", V(9), 1, V(4))
    k.valu("v_and_b32", V(10), 1, V(4))
    k.valu("v_lshlrev_b32", V(8), 4, V(1))
    k.valu("v_lshl_add_u32", V(8), V(9), 12, V(8))
    k.valu("v_lshl_add_u32", V(8), V(10), 3, V(8))
    k.valu("v_add_u32", V(11), 65536, V(8))
    for t in range(4):
        for w in range(8):
            off = w*16384 + t*1024
            k.dsread("ds_read_b64", V(96 + (t*8 + w)*2, 2), V(8) if off < 65536 else V(11), off % 65536)
    k.wait_lg_all()
    for t in range(4):
        b = 96 + t*16
        for q in range(2):
            k.valu("v_add_f32", V(b+q), V(b+q), V(b+2+q))
            k.valu("v_add_f32", V(b+4+q), V(b+4+q), V(b+6+q))
            k.valu("v_add_f32", V(b+8+q), V(b+8+q), V(b+10+q))
            k.valu("v_add_f32", V(b+12+q), V(b+12+q), V(b+14+q))
        for q in range(2):
            k.valu("v_add_f32", V(b+q), V(b+q), V(b+4+q))
            k.valu("v_add_f32", V(b+8+q), V(b+8+q), V(b+12+q))
        for q in range(2):
            k.valu("v_add_f32", V(b+q), V(b+q), V(b+8+q))
    k.valu("v_lshlrev_b32", V(12), 4, V(9))
    k.valu("v_lshl_add_u32", V(12), V(3), 2, V(12))
    k.valu("v_lshl_add_u32", V(12), V(10), 1, V(12))
    k.valu("v_mul_u32_u24", V(12), 896, V(12))
    k.valu("v_lshl_add_u32", V(12), V(2), 3, V(12))
    e("s_mul_i32 s6, s4, 57344")
    e("s_add_u32 s6, s6, s7")
    for q in range(2):
        k.valu("v_cvt_pk_bf16_f32", V(16+q*2), V(96+q), V(112+q))
        k.valu("v_cvt_pk_bf16_f32", V(17+q*2), V(128+q), V(144+q))
        k.vstore("buffer_store_dwordx2", V(16+q*2, 2), V(12), SOUT, "s6", offset=q*896)
    k.wait_vm_all()
    k.stamp()
    if DBG:
        k.raw("v_readfirstlane_b32 s57, v4")
        k.raw("s_nop 4")
    k.dump("s57", 16)
    k.label("L_op_end")
    e("s_endpgm")
    return k

HEADER = """; Kernarg layout for this problem (64 bytes, ptrs only, base s[0:1]):
;   offset   0: d_in[0] x  shape=(16, 144, 448) dtype=bfloat16 strides=(129024, 896, 2) contiguous=True
;   offset   8: d_in[1] k_cache  shape=(16, 16, 512, 256) dtype=bfloat16 strides=(4194304, 262144, 512, 2) contiguous=True
;   offset  16: d_in[2] v_cache  shape=(16, 16, 512, 256) dtype=bfloat16 strides=(4194304, 262144, 512, 2) contiguous=True
;   offset  24: d_in[3] wq  shape=(448, 4096) dtype=bfloat16 strides=(8192, 2) contiguous=True
;   offset  32: d_in[4] wo  shape=(4096, 448) dtype=bfloat16 strides=(896, 2) contiguous=True
;   offset  40: d_out     shape=(16, 144, 448) dtype=bfloat16 (2 bytes/elem)
;   offset  48: d_debug   256 bytes
;   offset  56: d_ws      268435456 bytes workspace
; Generated by a Python generator script (hand-designed schedule).
; Launch 1: fused Q-projection + attention per (batch, head); writes O (bf16) to d_ws.
; Launch 2: output projection O @ Wo.
; @launch kernel=standalone__mha_block_cached__near_ridge_kernel grid=(256,1,1) block=(256,1,1) lds=%d
; @launch kernel=oproj_kernel grid=(256,1,1) block=(512,1,1) lds=131072
.amdgcn_target "amdgcn-amd-amdhsa--gfx950"
.text
""" % LDS1

def main():
    a = gen_attn(); o = gen_oproj()
    s = HEADER
    s += ".globl standalone__mha_block_cached__near_ridge_kernel\n.p2align 8\n.type standalone__mha_block_cached__near_ridge_kernel,@function\n"
    s += a.text()
    s += ".globl oproj_kernel\n.p2align 8\n.type oproj_kernel,@function\n"
    s += o.text()
    s += """.section .rodata,"a"
.p2align 6
.amdhsa_kernel standalone__mha_block_cached__near_ridge_kernel
  .amdhsa_next_free_vgpr 512
  .amdhsa_next_free_sgpr 96
  .amdhsa_accum_offset 256
  .amdhsa_group_segment_fixed_size 0
  .amdhsa_kernarg_size 64
  .amdhsa_user_sgpr_count 2
  .amdhsa_user_sgpr_kernarg_segment_ptr 1
  .amdhsa_system_sgpr_workgroup_id_x 1
.end_amdhsa_kernel
.p2align 6
.amdhsa_kernel oproj_kernel
  .amdhsa_next_free_vgpr 256
  .amdhsa_next_free_sgpr 96
  .amdhsa_accum_offset 256
  .amdhsa_group_segment_fixed_size 0
  .amdhsa_kernarg_size 64
  .amdhsa_user_sgpr_count 2
  .amdhsa_user_sgpr_kernarg_segment_ptr 1
  .amdhsa_system_sgpr_workgroup_id_x 1
.end_amdhsa_kernel
"""
    out = sys.argv[1] if len(sys.argv) > 1 else "standalone__mha_block_cached__near_ridge.s"
    open(out, "w").write(s)
    print("attn counts", a.count, "nops", a.nops)
    print("oproj counts", o.count, "nops", o.nops)

main()
```

```python
import sys, math
sys.path.insert(0, 'gen')
from asmlib import *

C1 = math.log2(math.e) / 16.0
import os
DBG = int(os.environ.get('DBG','0'))
DBGWG = int(os.environ.get('DBGWG','37'))
KRATE = int(os.environ.get('KRATE','2'))
K0 = int(os.environ.get('K0','8'))
SPACE = float(os.environ.get('SPACE','0.056'))
PVSP = int(os.environ.get('PVSP','4'))
EXPSP = int(os.environ.get('EXPSP','2'))
NOWQ = int(os.environ.get('NOWQ','0'))
NOXR = int(os.environ.get('NOXR','0'))
NOPERM = int(os.environ.get('NOPERM','0'))
KFLAGS = os.environ.get('KFLAGS',' nt')
OSTF = os.environ.get('OSTF','')
OLDF = os.environ.get('OLDF','')
WOF = os.environ.get('WOF','')
WQF = os.environ.get('WQF','')
XF = os.environ.get('XF','')
LDS_MX = 147456
LDS_SUM = LDS_MX + 2304
LDS_OST = LDS_SUM + 2304
LDS1 = LDS_OST + 8192

def add_stamp(k, sb=64):
    k.nst = 0
    def stamp():
        if not DBG: return
        k.raw("s_memtime s[62:63]")
        k.raw("s_waitcnt lgkmcnt(0)")
        k.raw(f"s_mov_b32 s{sb+k.nst}, s62")
        k.nst += 1
    k.stamp = stamp
    def dump(waveS, base):
        if not DBG: return
        k.raw(f"s_cmp_lg_u32 s2, {DBGWG}")
        k.raw(f"s_cbranch_scc1 L_nodump{base}")
        k.raw(f"s_cmp_lg_u32 {waveS}, 0")
        k.raw(f"s_cbranch_scc1 L_nodump{base}")
        k.raw(f"s_load_dwordx2 s[60:61], s[0:1], {56 if base == 0 else 48}")
        k.raw("s_load_dwordx2 s[56:57], s[0:1], 56")
        k.raw("s_waitcnt lgkmcnt(0)")
        k.raw(f"v_mov_b32 v1, 0")
        if base == 0:
            k.raw("s_add_u32 s60, s60, 0x4000000")
            k.raw("s_addc_u32 s61, s61, 0")
        k.raw("s_mov_b32 s62, 256")
        k.raw("s_mov_b32 s63, 0x20000")
        for i in range(k.nst):
            k.raw(f"s_sub_u32 s58, s{sb+i}, s{sb}")
            k.raw(f"v_mov_b32 v2, s58")
            k.raw(f"buffer_store_dword v2, v1, s[60:63], 0 offen offset:{(0 if base == 0 else 12)*4 + i*4}")
        if base != 0:
            k.raw("s_add_u32 s56, s56, 0x4000000")
            k.raw("s_addc_u32 s57, s57, 0")
            k.raw("s_mov_b32 s58, 256")
            k.raw("s_mov_b32 s59, 0x20000")
            for i in range(3):
                k.raw(f"buffer_load_dwordx4 v[4:7], v1, s[56:59], 0 offen offset:{i*16}")
                k.raw("s_waitcnt vmcnt(0)")
                k.raw(f"buffer_store_dwordx4 v[4:7], v1, s[60:63], 0 offen offset:{i*16}")
                k.raw("s_waitcnt vmcnt(0)")
        k.raw("s_waitcnt vmcnt(0)")
        k.label(f"L_nodump{base}")
    k.dump = dump

def gen_attn():
    k = Asm()
    add_stamp(k)
    e = k.raw
    k.label("standalone__mha_block_cached__near_ridge_kernel")
    e("s_cmp_ge_u32 s2, 256")
    e("s_cbranch_scc1 L_attn_end")
    k.stamp()
    e("s_load_dwordx8 s[36:43], s[0:1], 0")
    e("s_load_dwordx2 s[44:45], s[0:1], 56")
    e("s_load_dwordx2 s[88:89], s[0:1], 32")
    e("v_and_b32 v1, 63, v0")
    e("v_and_b32 v2, 15, v0")
    e("v_lshrrev_b32 v3, 4, v1")
    e("v_lshrrev_b32 v27, 6, v0")
    e("s_lshr_b32 s6, s2, 3")
    e("s_and_b32 s7, s2, 7")
    e("s_and_b32 s4, s7, 3")
    e("s_lshl_b32 s4, s4, 2")
    e("s_and_b32 s3, s6, 3")
    e("s_add_u32 s4, s4, s3")
    e("s_lshr_b32 s3, s7, 2")
    e("s_lshl_b32 s3, s3, 3")
    e("s_lshr_b32 s6, s6, 2")
    e("s_add_u32 s3, s3, s6")
    e("s_lshl_b32 s7, s3, 4")
    e("s_add_u32 s7, s7, s4")
    e("v_readfirstlane_b32 s5, v27")
    e("s_mov_b32 s33, " + f32hex(C1))
    e("s_mov_b32 s34, 0x05040100")
    e("s_mov_b32 s35, 0x07060302")
    e("v_lshrrev_b32 v28, 1, v3")
    e("v_xor_b32 v29, v3, v28")
    e("v_and_b32 v29, 1, v29")
    e("v_lshl_or_b32 v29, v29, 1, v28")
    e("v_and_b32 v30, 3, v1")
    e("v_xor_b32 v29, v29, v30")
    e("v_lshrrev_b32 v30, 2, v1")
    e("v_mul_u32_u24 v4, 896, v30")
    e("v_lshl_add_u32 v4, v29, 4, v4")
    e("v_lshl_add_u32 v4, v27, 6, v4")
    e("v_lshrrev_b32 v30, 2, v2")
    e("v_lshrrev_b32 v28, 1, v30")
    e("v_xor_b32 v29, v30, v28")
    e("v_and_b32 v29, 1, v29")
    e("v_lshl_or_b32 v29, v29, 1, v28")
    e("v_xor_b32 v29, v29, v3")
    e("v_lshlrev_b32 v5, 6, v2")
    e("v_lshl_add_u32 v5, v29, 4, v5")
    e("v_add_u32 v6, 0x10000, v5")
    e("v_lshlrev_b32 v7, 3, v2")
    e("v_lshl_add_u32 v7, v3, 16, v7")
    e("v_lshrrev_b32 v28, 1, v3")
    e("v_xor_b32 v29, v3, v28")
    e("v_and_b32 v29, 1, v29")
    e("v_lshl_or_b32 v29, v29, 1, v28")
    e("v_and_b32 v30, 3, v1")
    e("v_xor_b32 v29, v29, v30")
    e("v_lshrrev_b32 v30, 2, v1")
    e("v_lshlrev_b32 v8, 9, v30")
    e("v_lshl_add_u32 v8, v29, 4, v8")
    e("v_lshlrev_b32 v0, 4, v1")
    e("v_lshl_add_u32 v0, v27, 12, v0")
    e(f"v_add_u32 v0, {73728}, v0")
    e("v_lshlrev_b32 v9, 3, v2")
    e("v_lshl_add_u32 v9, v3, 12, v9")
    e("v_xor_b32 v28, v3, v2")
    e("v_lshlrev_b32 v28, 4, v28")
    e("v_lshl_add_u32 v18, v2, 9, v28")
    e("v_lshl_add_u32 v23, v2, 10, v28")
    e("v_lshrrev_b32 v28, 1, v3")
    e("v_xor_b32 v28, v28, v2")
    e("v_lshlrev_b32 v28, 4, v28")
    e("v_lshl_add_u32 v21, v2, 10, v28")
    e("v_lshl_add_u32 v21, v27, 8, v21")
    e("v_and_b32 v28, 1, v3")
    e("v_lshl_add_u32 v21, v28, 3, v21")
    e("s_lshl_b32 s28, s5, 10")
    e("s_lshl_b32 s29, s4, 9")
    e("s_lshl_b32 s6, s5, 7")
    e("s_add_u32 s29, s29, s6")
    e("s_lshl_b32 s30, s5, 16")
    e("s_mov_b32 s31, s6")
    e("s_mul_i32 s32, s3, 1179648")
    e("s_lshl_b32 s6, s4, 13")
    e("s_add_u32 s32, s32, s6")
    e("s_lshl_b32 s6, s5, 11")
    e("s_add_u32 s32, s32, s6")
    for t in range(8):
        e(f"s_add_u32 s{48+t}, s30, {t*8192}")
    e("s_waitcnt lgkmcnt(0)")
    e("s_mul_i32 s6, s3, 129024")
    e("s_add_u32 s8, s36, s6")
    e("s_addc_u32 s9, s37, 0")
    e("s_mov_b32 s10, 129024")
    e("s_mov_b32 s11, 0x20000")
    e("s_mov_b32 s12, s42")
    e("s_mov_b32 s13, s43")
    e("s_mov_b32 s14, 3670016")
    e("s_mov_b32 s15, 0x20000")
    e("s_lshl_b32 s6, s7, 18")
    e("s_add_u32 s16, s38, s6")
    e("s_addc_u32 s17, s39, 0")
    e("s_mov_b32 s18, 262144")
    e("s_mov_b32 s19, 0x20000")
    e("s_add_u32 s20, s40, s6")
    e("s_addc_u32 s21, s41, 0")
    e("s_mov_b32 s22, 262144")
    e("s_mov_b32 s23, 0x20000")
    e("s_mov_b32 s24, s44")
    e("s_mov_b32 s25, s45")
    e("s_mov_b32 s26, 18874368")
    e("s_mov_b32 s27, 0x20000")
    e("s_mov_b32 s90, 3670016")
    e("s_mov_b32 s91, 0x20000")
    e("s_add_u32 s84, s44, 33554432")
    e("s_addc_u32 s85, s45, 0")
    e("s_mov_b32 s86, 3670016")
    e("s_mov_b32 s87, 0x20000")
    SX, SWQ, SK, SV, SO = "s[8:11]", "s[12:15]", "s[16:19]", "s[20:23]", "s[24:27]"

    def dma(sp, m):
        e(f"s_add_u32 m0, s28, {m*14336 + sp*4096}")
        e(f"s_mov_b32 s46, {m*14336 + sp*256}")
        return k.vdma(V(4), SX, "s46", flags=XF)
    e("s_cmp_ge_u32 s5, 2")
    e("s_cbranch_scc1 L_skipdma")
    for m in range(9):
        dma(3, m)
    k.label("L_skipdma")

    NW = 4
    WRAW = lambda st, j: V(32 + st*16 + j*2, 2)
    WFR = lambda st, t: V(96 + st*16 + t*4, 4)
    FR = lambda m: V(176 + m*4, 4)
    ACCQ = lambda m, t: A((m*4+t)*4, 4)
    VB_A = [V(128 + 4*i, 4) for i in range(12)]
    VB_B = [V(212 + 4*i, 4) for i in range(8)]
    AR = [A(144 + 4*i, 4) for i in range(28)]
    init_slots = VB_A + VB_B + AR
    stmp = [46, 47, 58, 59]
    sidx = [0]
    def stemp():
        sidx[0] = (sidx[0] + 1) % len(stmp)
        return stmp[sidx[0]]

    wq_tok = {}
    def wq_loads(s):
        fl = []
        for j in range(8):
            def f(j=j):
                st = stemp()
                e(f"s_add_u32 s{st}, s29, {(32*s+j)*8192}")
                wq_tok[s] = k.vload("buffer_load_dwordx2", WRAW(s % NW, j), V(7), SWQ, f"s{st}", flags=WQF)
            fl.append(f)
        return fl
    def issue_wq(s):
        for f in wq_loads(s): f()
    mem = []
    k_tok = {}
    k_slot = {}
    k_next = [0]
    korder = [(2*sp + ee, t) for sp in range(4) for t in range(4, 8) for ee in range(2)] + \
             [(2*sp + ee, t) for sp in range(4) for t in range(0, 4) for ee in range(2)]
    def issue_k(slot):
        s_, t = korder[k_next[0]]; k_next[0] += 1
        i = s_*8 + t
        k_slot[i] = slot
        k_tok[i] = k.vload("buffer_load_dwordx4", slot, V(8), SK, f"s{48+t}", offset=s_*64, flags=KFLAGS)
    kp_tok = {}
    ksc = [0]
    def kperm(i):
        while i not in k_tok: mem.pop(0)()
        k.wait_vm(k_tok[i])
        sl = k_slot[i]
        off = (ksc[0] % 4) * 1024; ksc[0] += 1
        k.dswrite("ds_write_b128", V(0), sl, off)
        kp_tok[i] = k.dsread("ds_read_b128", sl, V(5), off)
    v_tok = {}
    v_reg = {}
    v_cnt = {}
    def v_loads(u, regs):
        v_reg[u] = regs
        v_cnt[u] = 0
        fl = []
        for j in range(8):
            def f(j=j):
                st = stemp()
                e(f"s_add_u32 s{st}, s31, {u*16384}")
                v_tok[u] = k.vload("buffer_load_dwordx2", regs[j], V(9), SV, f"s{st}", offset=j*512, flags=KFLAGS)
                v_cnt[u] += 1
            f.kb = 0.5
            fl.append(f)
        return fl
    def issue_v(u, regs):
        for f in v_loads(u, regs): f()

    def perm_fill(raws, out):
        fl = []
        for t in range(4):
            for i in range(4):
                hi = raws[2*i+1]; lo = raws[2*i]
                def f(t=t, i=i, hi=hi, lo=lo):
                    o = out(t)
                    k.valu("v_perm_b32", V(o[1]+i), V(hi[1] + (t >> 1)), V(lo[1] + (t >> 1)), "s35" if (t & 1) else "s34")
                fl.append(f)
        return fl

    xtok = {}
    ring_next = 0
    for m in range(9): xtok[0] = dma(0, m)
    issue_wq(0); issue_wq(1); issue_wq(2)
    for _ in range(K0):
        issue_k(init_slots[ring_next]); ring_next += 1
    k.wait_vm(xtok[0])
    k.barrier()
    k.stamp()

    def xread(m, s):
        off = (m*14 + s) * 1024
        if off < 65536: return k.dsread("ds_read_b128", FR(m), V(5), off)
        return k.dsread("ds_read_b128", FR(m), V(6), off - 65536)
    fr_tok = {}
    for m in range(9): fr_tok[m] = xread(m, 0)
    k.wait_vm(wq_tok[0])
    for f in perm_fill([WRAW(0, j) for j in range(8)], lambda t: WFR(0, t)): f()
    mem = []
    def dma_f(sp, m):
        def f(): xtok[sp] = dma(sp, m)
        return f
    def k_f():
        nonlocal ring_next
        if ring_next < len(init_slots):
            issue_k(init_slots[ring_next]); ring_next += 1
    mem += [dma_f(1, m) for m in range(9)] + [dma_f(2, m) for m in range(9)]
    for s in range(14):
        if s in (3, 7):
            k.wait_vm(xtok[(s+1)//4])
            k.barrier()
        if s + 3 < 14: mem = wq_loads(s+3) + mem
        mem += [k_f] * KRATE
        fill = []
        if s + 1 < 14:
            fill.append(lambda s=s: k.wait_vm(wq_tok[s+1]))
            fill += perm_fill([WRAW((s+1) % NW, j) for j in range(8)], lambda t, s=s: WFR((s+1) % 2, t))
        n = 0
        for m in range(9):
            k.wait_lg(fr_tok[m])
            for t in range(4):
                k.mfma(ACCQ(m, t), FR(m), WFR(s % 2, t), ACCQ(m, t) if s else 0)
                if n % 2 == 0 and mem: mem.pop(0)()
                if n >= 12 and fill: fill.pop(0)()
                n += 1
            if s + 1 < 14: fr_tok[m] = xread(m, s+1)
        while fill: fill.pop(0)()
    while mem: mem.pop(0)()
    k.stamp()
    while ring_next < len(init_slots):
        issue_k(init_slots[ring_next]); ring_next += 1
    k.stamp()
    k.barrier()
    k.valu("v_and_b32", V(28), 1, V(27))
    k.valu("v_lshlrev_b32", V(28), 3, V(28))
    k.valu("v_lshrrev_b32", V(29), 1, V(2))
    k.valu("v_add_u32", V(28), V(28), V(29))
    k.valu("v_lshrrev_b32", V(29), 1, V(27))
    k.valu("v_lshlrev_b32", V(29), 8, V(29))
    k.valu("v_and_b32", V(30), 1, V(2))
    k.valu("v_lshl_add_u32", V(29), V(30), 3, V(29))
    for r in range(4):
        k.valu("v_lshl_add_u32", V(30), V(3), 2, r)
        k.valu("v_xor_b32", V(31), V(28), V(30))
        k.valu("v_lshl_add_u32", V(10+r), V(31), 4, V(29))
        k.valu("v_lshl_add_u32", V(10+r), V(30), 9, V(10+r))
        k.valu("v_add_u32", V(14+r), 32768, V(10+r))
    tb = 244
    for m in range(9):
        for r in range(4):
            T = tb + ((m*4 + r) % 2) * 6
            for t in range(4):
                k.valu("v_accvgpr_read_b32", V(T+t), A((m*4+t)*4 + r))
            k.valu("v_cvt_pk_bf16_f32", V(T+4), V(T), V(T+1))
            k.valu("v_cvt_pk_bf16_f32", V(T+5), V(T+2), V(T+3))
            if m < 4: k.dswrite("ds_write_b64", V(10+r), V(T+4, 2), m*8192)
            else: k.dswrite("ds_write_b64", V(14+r), V(T+4, 2), (m-4)*8192)
    k.wait_lg_all()
    k.barrier()
    k.stamp()

    def ACCS(t, m):
        if t < 4: return V(32 + (m*4 + t)*4, 4)
        return A((m*4 + (t-4))*4, 4)
    def qaddr(s):
        k.valu("v_xor_b32", V(19), (s & 3) << 6, V(18))
        k.valu("v_add_u32", V(20), 65536, V(19))
    def qread(m, s):
        off = m*8192 + (s >> 2)*256
        if off < 65536: return k.dsread("ds_read_b128", FR(m), V(19), off)
        return k.dsread("ds_read_b128", FR(m), V(20), off - 65536)
    k.valu("v_lshl_add_u32", V(5), V(27), 12, V(5))
    k.valu("v_add_u32", V(5), 73728, V(5))
    seq = [(p, s_) for p in (0, 1) for s_ in range(8)]
    tiles = lambda p: range(4, 8) if p == 0 else range(0, 4)
    qaddr(0)
    for t in tiles(0): kperm(t)
    for m in range(9): fr_tok[m] = qread(m, 0)
    v_next = 0
    vfree = []
    mem = []
    kq = k_next[0]
    k.valu("v_mul_u32_u24", V(28), 28, V(27))
    k.valu("v_add_u32", V(28), V(28), V(1))
    k.valu("v_cmp_le_u32", "vcc", 56, V(28))
    k.raw("s_nop 1")
    k.valu("v_cndmask_b32", V(29), 0, 1, "vcc")
    k.valu("v_mul_u32_u24", V(30), 56, V(29))
    k.valu("v_sub_u32", V(28), V(28), V(30))
    k.valu("v_mul_u32_u24", V(30), 7168, V(29))
    k.valu("v_lshl_add_u32", V(96), V(28), 4, V(30))
    e("s_mul_i32 s92, s2, 14336")
    e("s_add_u32 s93, s92, 3584")
    k.valu("v_lshrrev_b32", V(30), 3, V(28))
    k.valu("v_lshlrev_b32", V(97), 12, V(30))
    k.valu("v_and_b32", V(30), 7, V(28))
    k.valu("v_lshl_add_u32", V(97), V(30), 5, V(97))
    k.valu("v_lshl_add_u32", V(97), V(29), 8, V(97))
    e("s_lshr_b32 s94, s2, 1")
    e("s_mul_i32 s94, s94, 28672")
    e("s_and_b32 s95, s2, 1")
    e("s_lshl_b32 s95, s95, 9")
    e("s_add_u32 s94, s94, s95")
    wo_tok = [None]
    def wo_load(j):
        def f():
            e("s_mov_b64 exec, 0xfffffff")
            wo_tok[0] = k.vload("buffer_load_dwordx4", V(32 + 4*j, 4), V(96), "s[88:91]", "s92" if j < 4 else "s93", offset=(j & 3)*896)
            e("s_mov_b64 exec, -1")
        return f
    wl = [wo_load(j) for j in range(8)]
    for f in wl: f.kb = 0.1
    mem += wl
    def wo_perm(e_, i2):
        return lambda: k.valu("v_perm_b32", V(64 + 4*e_ + i2), V(32 + 4*(2*i2+1) + (e_ >> 1)), V(32 + 4*(2*i2) + (e_ >> 1)), "s35" if (e_ & 1) else "s34")
    def wo_store(e_):
        def f():
            e("s_mov_b64 exec, 0xfffffff")
            k.vstore("buffer_store_dwordx4", V(64 + 4*e_, 4), V(97), "s[84:87]", "s94", offset=(e_ & 3)*1024 + (e_ >> 2)*16)
            e("s_mov_b64 exec, -1")
        return f
    wfill = []
    budget = [0.0]
    for idx, (p, s) in enumerate(seq):
        nxt = seq[idx+1] if idx + 1 < len(seq) else None
        if nxt: qaddr(nxt[1])
        if idx == 5:
            wfill = [lambda: k.wait_vm(wo_tok[0])] + [wo_perm(e_, i2) for e_ in range(8) for i2 in range(4)]
        if idx == 8:
            def mk(m):
                fl = []
                for half in range(2):
                    for q in range(8):
                        t = 4 + half*2 + (q >> 2); r = q & 3
                        fl.append(lambda t=t, r=r, q=q, m=m: k.valu("v_accvgpr_read_b32", V(10+q), A(ACCS(t, m)[1] + r)))
                    if half == 0:
                        fl.append(lambda m=m: k.valu("v_max3_f32", V(244+m), V(10), V(11), V(12)))
                    else:
                        fl.append(lambda m=m: k.valu("v_max3_f32", V(244+m), V(10), V(11), V(244+m)))
                        fl.append(lambda m=m: k.valu("v_max_f32", V(244+m), V(12), V(244+m)))
                    fl.append(lambda m=m: k.valu("v_max3_f32", V(244+m), V(13), V(14), V(244+m)))
                    fl.append(lambda m=m: k.valu("v_max3_f32", V(244+m), V(15), V(16), V(244+m)))
                    fl.append(lambda m=m: k.valu("v_max_f32", V(244+m), V(17), V(244+m)))
                return fl
            for m_ in range(9): wfill += mk(m_)
        if idx == 6:
            ws_ = [wo_store(e_) for e_ in range(8)]
            for f in ws_: f.kb = 0.1
            mem = ws_ + mem
        n = 0
        for m in range(9):
            k.wait_lg(fr_tok[m])
            for t in tiles(p):
                i = s*8 + t
                k.wait_lg(kp_tok[i])
                k.mfma(ACCS(t, m), k_slot[i], FR(m), ACCS(t, m) if s else 0)
                budget[0] += SPACE
                while mem and budget[0] >= getattr(mem[0], 'kb', 1.0):
                    budget[0] -= getattr(mem[0], 'kb', 1.0); mem.pop(0)()
                if wfill: wfill.pop(0)()
                n += 1
            if nxt:
                fr_tok[m] = qread(m, nxt[1])
                if 4 <= m < 8: kperm(nxt[1]*8 + list(tiles(nxt[0]))[m-4])
        for t in tiles(p):
            sl = k_slot[s*8 + t]
            if sl in VB_A: continue
            if kq < 64:
                mem.append(lambda sl=sl: issue_k(sl)); kq += 1
            elif sl in AR: vfree.append(sl)
        while len(vfree) >= 4 and v_next < 7:
            sls = vfree[:4]; vfree = vfree[4:]
            regs = []
            for sl in sls:
                regs += [A(sl[1], 2), A(sl[1] + 2, 2)]
            mem += v_loads(v_next, regs); v_next += 1
    assert v_next == 7, v_next
    while wfill: wfill.pop(0)()

    k.stamp()
    NEGM = lambda m: V(212 + 2*m)
    PSUM = lambda m: V(176 + 2*m, 2)
    e("s_mov_b32 s80, s33")
    e("s_mov_b32 s81, s33")
    k.valu("v_lshlrev_b32", V(28), 4, V(2))
    k.valu("v_lshl_add_u32", V(28), V(27), 2, V(28))
    k.valu("v_add_u32", V(28), LDS_MX, V(28))
    k.valu("v_lshlrev_b32", V(29), 4, V(2))
    k.valu("v_add_u32", V(29), LDS_MX, V(29))
    for m in range(9):
        mx = NEGM(m); m2 = V(213 + 2*m)
        vals = []
        for t in range(4):
            b_ = ACCS(t, m)[1]
            vals += [V(b_+r) for r in range(4)]
        k.valu("v_max3_f32", mx, vals[0], vals[1], V(244 + m))
        k.valu("v_max3_f32", m2, vals[2], vals[3], vals[4])
        k.valu("v_max3_f32", mx, vals[5], vals[6], mx)
        k.valu("v_max3_f32", m2, vals[7], vals[8], m2)
        k.valu("v_max3_f32", mx, vals[9], vals[10], mx)
        k.valu("v_max3_f32", m2, vals[11], vals[12], m2)
        k.valu("v_max3_f32", mx, vals[13], vals[14], mx)
        k.valu("v_max3_f32", mx, vals[15], m2, mx)
    for m in range(9):
        mx = NEGM(m); tm = V(213 + 2*m)
        k.valu("v_mov_b32", tm, mx)
    for m in range(9):
        mx = NEGM(m); tm = V(213 + 2*m)
        k.valu("v_permlane32_swap_b32", tm, mx, permlane=True, extra_w=(mx,))
    for m in range(9):
        mx = NEGM(m); tm = V(213 + 2*m)
        k.valu("v_max_f32", mx, tm, mx)
    for m in range(9):
        mx = NEGM(m); tm = V(213 + 2*m)
        k.valu("v_mov_b32", tm, mx)
    for m in range(9):
        mx = NEGM(m); tm = V(213 + 2*m)
        k.valu("v_permlane16_swap_b32", tm, mx, permlane=True, extra_w=(mx,))
    for m in range(9):
        mx = NEGM(m); tm = V(213 + 2*m)
        k.valu("v_max_f32", mx, tm, mx)
        k.dswrite("ds_write_b32", V(28), mx, m*256)
        if mem: mem.pop(0)()
    k.wait_lg_all()
    k.barrier()
    k.stamp()
    toks = []
    for m in range(9):
        toks.append(k.dsread("ds_read_b128", V(176 + m*4, 4), V(29), m*256))
    k.valu("v_mov_b32", V(231), "s33")
    for m in range(9):
        k.wait_lg(toks[m])
        T = 176 + m*4
        k.valu("v_max3_f32", NEGM(m), V(T), V(T+1), V(T+2))
        k.valu("v_max_f32", NEGM(m), V(T+3), NEGM(m))
    for m in range(9):
        k.valu("v_mul_f32", NEGM(m), V(231), NEGM(m))
    for m in range(9):
        k.valu("v_sub_f32", NEGM(m), 0, NEGM(m))
    tl = [(m, t) for m in range(9) for t in range(8)]
    def sregs(n):
        m, t = tl[n]
        if t < 4: return ACCS(t, m)[1]
        return 196 + (n % 4)*4
    def stageA(n):
        m, t = tl[n]; S = sregs(n)
        if t >= 4:
            ab = ACCS(t, m)[1]
            for r in range(4):
                k.valu("v_accvgpr_read_b32", V(S+r), A(ab+r))
        for h_ in range(2):
            k.valu("v_pk_fma_f32", V(S+2*h_, 2), V(S+2*h_, 2), "s[80:81]", V(NEGM(m)[1], 2), mods=" op_sel_hi:[1,1,0]")
        for r in range(4):
            k.valu("v_exp_f32", V(S+r), V(S+r), trans=True)
    def stageB(n):
        m, t = tl[n]; S = sregs(n)
        if t == 0:
            if m == 0: k.valu("v_mov_b32", V(22), V(21))
            else: k.valu("v_add_u32", V(22), m*16384, V(21))
        P = 232 + (n % 4)*2
        AD = 240 + (n % 4)
        k.valu("v_xor_b32", V(AD), t << 5, V(22))
        k.valu("v_cvt_pk_bf16_f32", V(P), V(S), V(S+1))
        k.valu("v_cvt_pk_bf16_f32", V(P+1), V(S+2), V(S+3))
        if t == 0:
            k.valu("v_pk_add_f32", PSUM(m), V(S, 2), V(S+2, 2))
        else:
            k.valu("v_pk_add_f32", PSUM(m), V(S, 2), PSUM(m))
            k.valu("v_pk_add_f32", PSUM(m), V(S+2, 2), PSUM(m))
        k.dswrite("ds_write_b64", V(AD), V(P, 2))
        if mem and n % EXPSP == 0: mem.pop(0)()
        if t == 7:
            mem.extend(v_loads(7 + m, [V(32 + m*16 + 2*j, 2) for j in range(8)]))
    stageA(0)
    for n in range(len(tl)):
        if n + 1 < len(tl): stageA(n+1)
        stageB(n)
    k.valu("v_mul_u32_u24", V(28), 576, V(27))
    k.valu("v_lshl_add_u32", V(28), V(2), 2, V(28))
    k.valu("v_add_u32", V(28), LDS_SUM, V(28))
    for m in range(9):
        b_ = PSUM(m)[1]
        k.valu("v_add_f32", V(b_), V(b_), V(b_+1))
    for m in range(9):
        b_ = PSUM(m)[1]
        k.valu("v_mov_b32", V(b_+1), V(b_))
    for m in range(9):
        b_ = PSUM(m)[1]
        k.valu("v_permlane32_swap_b32", V(b_+1), V(b_), permlane=True, extra_w=(V(b_),))
    for m in range(9):
        b_ = PSUM(m)[1]
        k.valu("v_add_f32", V(b_), V(b_+1), V(b_))
    for m in range(9):
        b_ = PSUM(m)[1]
        k.valu("v_mov_b32", V(b_+1), V(b_))
    for m in range(9):
        b_ = PSUM(m)[1]
        k.valu("v_permlane16_swap_b32", V(b_+1), V(b_), permlane=True, extra_w=(V(b_),))
    for m in range(9):
        b_ = PSUM(m)[1]
        k.valu("v_add_f32", V(b_), V(b_+1), V(b_))
        k.dswrite("ds_write_b32", V(28), V(b_), m*64)
    k.wait_lg_all()
    k.barrier()
    k.stamp()

    ACCO = lambda m, t: A((m*4+t)*4, 4)
    VFR = lambda st, t: V(212 + st*16 + t*4, 4)
    def paddr(u):
        k.valu("v_xor_b32", V(24), (u & 3) << 6, V(23))
        k.valu("v_add_u32", V(25), 65536, V(24))
        k.valu("v_add_u32", V(26), 131072, V(24))
    def pread(m, u):
        off = m*16384 + (u >> 2)*256
        return k.dsread("ds_read_b128", FR(m), V(24 + off // 65536), off % 65536)
    def vprep(u):
        fl = [lambda: k.wait_vm(v_tok[u])]
        regs = v_reg[u]
        if regs[0][0] == 'a':
            tmp = [244, 246, 248, 250, 252, 254, 10, 12]
            for j in range(8):
                for q in range(2):
                    fl.append(lambda j=j, q=q: k.valu("v_accvgpr_read_b32", V(tmp[j]+q), A(regs[j][1]+q)))
            raws = [V(tmp[j], 2) for j in range(8)]
        else:
            raws = regs
        fl += perm_fill(raws, lambda t: VFR(u % 2, t))
        return fl
    paddr(0)
    for m in range(9): fr_tok[m] = pread(m, 0)
    while v_cnt[0] < 8: mem.pop(0)()
    for f in vprep(0): f()
    for u in range(16):
        fill = []
        if u + 1 < 16:
            paddr(u+1)
            while v_cnt[u+1] < 8: mem.pop(0)()
            fill = vprep(u+1)
        n = 0
        for m in range(9):
            k.wait_lg(fr_tok[m])
            for t in range(4):
                k.mfma(ACCO(m, t), FR(m), VFR(u % 2, t), ACCO(m, t) if u else 0)
                if fill: fill.pop(0)()
                if n % PVSP == PVSP-1 and mem: mem.pop(0)()
                n += 1
            if u + 1 < 16: fr_tok[m] = pread(m, u+1)
        while fill: fill.pop(0)()
    assert not mem

    k.stamp()
    k.valu("v_lshlrev_b32", V(28), 4, V(3))
    k.valu("v_add_u32", V(28), LDS_SUM, V(28))
    for m in range(9):
        for w in range(4):
            k.dsread("ds_read_b128", V(32 + (m*4+w)*4, 4), V(28), w*576 + m*64)
    k.valu("v_lshrrev_b32", V(29), 1, V(2))
    k.valu("v_lshlrev_b32", V(30), 2, V(3))
    k.valu("v_xor_b32", V(30), V(30), V(29))
    k.valu("v_lshlrev_b32", V(30), 4, V(30))
    k.valu("v_lshl_add_u32", V(30), V(29), 8, V(30))
    k.valu("v_and_b32", V(29), 1, V(2))
    k.valu("v_lshl_add_u32", V(30), V(29), 3, V(30))
    k.valu("v_lshl_add_u32", V(30), V(27), 11, V(30))
    k.valu("v_add_u32", V(10), LDS_OST, V(30))
    for r in range(1, 4):
        k.valu("v_xor_b32", V(10+r), r << 4, V(10))
    k.valu("v_xor_b32", V(30), V(2), V(3))
    k.valu("v_lshlrev_b32", V(30), 4, V(30))
    k.valu("v_lshl_add_u32", V(30), V(3), 8, V(30))
    k.valu("v_lshl_add_u32", V(30), V(27), 11, V(30))
    k.valu("v_add_u32", V(14), LDS_OST, V(30))
    k.valu("v_xor_b32", V(15), 64, V(14))
    k.valu("v_lshlrev_b32", V(16), 4, V(1))
    k.wait_lg_all()
    for m in range(9):
        b = 32 + m*16
        for r in range(4):
            k.valu("v_add_f32", V(b+r), V(b+r), V(b+4+r))
            k.valu("v_add_f32", V(b+8+r), V(b+8+r), V(b+12+r))
        for r in range(4):
            k.valu("v_add_f32", V(b+r), V(b+r), V(b+8+r))
        for r in range(4):
            k.valu("v_rcp_f32", V(b+r), V(b+r), trans=True)
    pend = None
    for m in range(9):
        b = 32 + m*16
        for r in range(4):
            T = 176 + ((m*4 + r) % 4) * 6
            for t in range(4):
                k.valu("v_accvgpr_read_b32", V(T+t), A((m*4+t)*4 + r))
            for t in range(4):
                k.valu("v_mul_f32", V(T+t), V(T+t), V(b+r))
            k.valu("v_cvt_pk_bf16_f32", V(T+4), V(T), V(T+1))
            k.valu("v_cvt_pk_bf16_f32", V(T+5), V(T+2), V(T+3))
            k.dswrite("ds_write_b64", V(10+r), V(T+4, 2))
        RB = 212 + (m % 2)*8
        t0 = k.dsread("ds_read_b128", V(RB, 4), V(14))
        t1 = k.dsread("ds_read_b128", V(RB+4, 4), V(15), 1024)
        if pend is not None:
            pm, pRB, pt1 = pend
            k.wait_lg(pt1)
            st = stemp()
            e(f"s_add_u32 s{st}, s32, {pm*131072}")
            k.vstore("buffer_store_dwordx4", V(pRB, 4), V(16), SO, f"s{st}", flags=OSTF)
            k.vstore("buffer_store_dwordx4", V(pRB+4, 4), V(16), SO, f"s{st}", offset=1024, flags=OSTF)
        pend = (m, RB, t1)
    pm, pRB, pt1 = pend
    k.wait_lg(pt1)
    st = stemp()
    e(f"s_add_u32 s{st}, s32, {pm*131072}")
    k.vstore("buffer_store_dwordx4", V(pRB, 4), V(16), SO, f"s{st}", flags=OSTF)
    k.vstore("buffer_store_dwordx4", V(pRB+4, 4), V(16), SO, f"s{st}", offset=1024, flags=OSTF)
    k.stamp()
    k.wait_vm_all()
    k.stamp()
    k.dump("s5", 0)
    k.label("L_attn_end")
    e("s_endpgm")
    return k

def gen_oproj():
    k = Asm()
    add_stamp(k, 84)
    e = k.raw
    k.label("oproj_kernel")
    e("s_cmp_ge_u32 s2, 256")
    e("s_cbranch_scc1 L_op_end")
    e("s_and_b32 s3, s2, 7")
    e("s_lshl_b32 s3, s3, 5")
    e("s_lshr_b32 s4, s2, 3")
    e("s_add_u32 s3, s3, s4")
    e("s_cmp_ge_u32 s3, 252")
    e("s_cbranch_scc1 L_op_end")
    k.stamp()
    e("s_load_dwordx4 s[36:39], s[0:1], 32")
    e("s_load_dwordx2 s[40:41], s[0:1], 56")
    e("s_mul_i32 s4, s3, 9363")
    e("s_lshr_b32 s4, s4, 16")
    e("s_mul_i32 s5, s4, 7")
    e("s_sub_u32 s5, s3, s5")
    e("v_and_b32 v1, 63, v0")
    e("v_and_b32 v2, 15, v0")
    e("v_lshrrev_b32 v3, 4, v1")
    e("v_lshrrev_b32 v4, 6, v0")
    e("s_mov_b32 s34, 0x05040100")
    e("s_mov_b32 s35, 0x07060302")
    e("v_lshlrev_b32 v5, 4, v1")
    e("v_lshl_add_u32 v5, v4, 14, v5")
    e("s_mov_b32 s6, 458752")
    e("v_mul_lo_u32 v6, s6, v4")
    e("v_lshl_add_u32 v6, v1, 4, v6")
    e("s_lshl_b32 s6, s4, 19")
    for m in range(4):
        for q in range(4):
            e(f"s_add_u32 s{64+m*4+q}, s6, {m*131072 + q*4096}")
    e("s_lshl_b32 s7, s5, 7")
    e("s_lshl_b32 s33, s5, 12")
    e("s_waitcnt lgkmcnt(0)")
    e("s_mov_b32 s8, s40"); e("s_mov_b32 s9, s41"); e("s_mov_b32 s10, 18874368"); e("s_mov_b32 s11, 0x20000")
    e("s_add_u32 s12, s40, 33554432"); e("s_addc_u32 s13, s41, 0"); e("s_mov_b32 s14, 3670016"); e("s_mov_b32 s15, 0x20000")
    e("s_mov_b32 s16, s38"); e("s_mov_b32 s17, s39"); e("s_mov_b32 s18, 2064384"); e("s_mov_b32 s19, 0x20000")
    SA, SB, SOUT = "s[8:11]", "s[12:15]", "s[16:19]"
    NS = 5
    AFR = lambda st, m: V(96 + st*32 + m*4, 4)
    BRAW = lambda st, j: V(96 + st*32 + 16 + j*2, 2)
    BFR = lambda st, t: V(16 + st*8*0 + t*4, 4) if False else V(16 + (st % 1)*16 + t*4, 4)
    ACC = lambda m, t: V(32 + (m*4+t)*4, 4)
    tokA = {}; tokB = {}
    sidx = [0]
    def stemp():
        sidx[0] = (sidx[0] + 1) % 4
        return 52 + sidx[0]
    BF = lambda st, t: V(96 + st*32 + 16 + t*4, 4)
    def loads(s):
        st = s % NS
        fl = []
        def fb(t):
            def f():
                if t == 0:
                    loads.sb = stemp()
                    e(f"s_add_u32 s{loads.sb}, s33, {s*28672}")
                tokB[s] = k.vload("buffer_load_dwordx4", BF(st, t), V(6), SB, f"s{loads.sb}", offset=t*1024)
            return f
        def fa(m):
            def f():
                tokA[s] = k.vload("buffer_load_dwordx4", AFR(st, m), V(5), SA, f"s{64+m*4+(s>>2)}", offset=(s&3)*1024, flags=OLDF)
            return f
        return [fb(0), fa(0), fb(1), fa(1), fb(2), fa(2), fb(3), fa(3)]
    for s in range(NS):
        for f in loads(s): f()
    k.stamp()
    for s in range(16):
        st = s % NS
        k.wait_vm(tokA[s])
        for m in range(4):
            for t in range(4):
                k.mfma(ACC(m, t), AFR(st, m), BF(st, t), ACC(m, t) if s else 0)
        if s + NS < 16:
            for f in loads(s + NS): f()
    k.stamp()
    k.valu("v_lshlrev_b32", V(8), 4, V(1))
    k.valu("v_lshl_add_u32", V(8), V(4), 14, V(8))
    for m in range(4):
        for t in range(4):
            k.dswrite("ds_write_b128", V(8), ACC(m, t), (m*4+t)*1024)
    k.wait_lg_all()
    k.barrier()
    k.valu("v_lshrrev_b32", V(9), 1, V(4))
    k.valu("v_and_b32", V(10), 1, V(4))
    k.valu("v_lshlrev_b32", V(8), 4, V(1))
    k.valu("v_lshl_add_u32", V(8), V(9), 12, V(8))
    k.valu("v_lshl_add_u32", V(8), V(10), 3, V(8))
    k.valu("v_add_u32", V(11), 65536, V(8))
    for t in range(4):
        for w in range(8):
            off = w*16384 + t*1024
            k.dsread("ds_read_b64", V(96 + (t*8 + w)*2, 2), V(8) if off < 65536 else V(11), off % 65536)
    k.wait_lg_all()
    for t in range(4):
        b = 96 + t*16
        for q in range(2):
            k.valu("v_add_f32", V(b+q), V(b+q), V(b+2+q))
            k.valu("v_add_f32", V(b+4+q), V(b+4+q), V(b+6+q))
            k.valu("v_add_f32", V(b+8+q), V(b+8+q), V(b+10+q))
            k.valu("v_add_f32", V(b+12+q), V(b+12+q), V(b+14+q))
        for q in range(2):
            k.valu("v_add_f32", V(b+q), V(b+q), V(b+4+q))
            k.valu("v_add_f32", V(b+8+q), V(b+8+q), V(b+12+q))
        for q in range(2):
            k.valu("v_add_f32", V(b+q), V(b+q), V(b+8+q))
    k.valu("v_lshlrev_b32", V(12), 4, V(9))
    k.valu("v_lshl_add_u32", V(12), V(3), 2, V(12))
    k.valu("v_lshl_add_u32", V(12), V(10), 1, V(12))
    k.valu("v_mul_u32_u24", V(12), 896, V(12))
    k.valu("v_lshl_add_u32", V(12), V(2), 3, V(12))
    e("s_mul_i32 s6, s4, 57344")
    e("s_add_u32 s6, s6, s7")
    for q in range(2):
        k.valu("v_cvt_pk_bf16_f32", V(16+q*2), V(96+q), V(112+q))
        k.valu("v_cvt_pk_bf16_f32", V(17+q*2), V(128+q), V(144+q))
        k.vstore("buffer_store_dwordx2", V(16+q*2, 2), V(12), SOUT, "s6", offset=q*896)
    k.wait_vm_all()
    k.stamp()
    if DBG:
        k.raw("v_readfirstlane_b32 s55, v4")
        k.raw("s_nop 4")
    k.dump("s55", 16)
    k.label("L_op_end")
    e("s_endpgm")
    return k

HEADER = """; Kernarg layout for this problem (64 bytes, ptrs only, base s[0:1]):
;   offset   0: d_in[0] x  shape=(16, 144, 448) dtype=bfloat16 strides=(129024, 896, 2) contiguous=True
;   offset   8: d_in[1] k_cache  shape=(16, 16, 512, 256) dtype=bfloat16 strides=(4194304, 262144, 512, 2) contiguous=True
;   offset  16: d_in[2] v_cache  shape=(16, 16, 512, 256) dtype=bfloat16 strides=(4194304, 262144, 512, 2) contiguous=True
;   offset  24: d_in[3] wq  shape=(448, 4096) dtype=bfloat16 strides=(8192, 2) contiguous=True
;   offset  32: d_in[4] wo  shape=(4096, 448) dtype=bfloat16 strides=(896, 2) contiguous=True
;   offset  40: d_out     shape=(16, 144, 448) dtype=bfloat16 (2 bytes/elem)
;   offset  48: d_debug   256 bytes
;   offset  56: d_ws      268435456 bytes workspace
; Generated by a Python generator script (hand-designed schedule).
; Launch 1: fused Q-projection + attention per (batch, head); writes O (bf16) to d_ws.
; Launch 2: output projection O @ Wo.
; @launch kernel=standalone__mha_block_cached__near_ridge_kernel grid=(256,1,1) block=(256,1,1) lds=%d
; @launch kernel=oproj_kernel grid=(256,1,1) block=(512,1,1) lds=131072
.amdgcn_target "amdgcn-amd-amdhsa--gfx950"
.text
""" % LDS1

def main():
    a = gen_attn(); o = gen_oproj()
    s = HEADER
    s += ".globl standalone__mha_block_cached__near_ridge_kernel\n.p2align 8\n.type standalone__mha_block_cached__near_ridge_kernel,@function\n"
    s += a.text()
    s += ".globl oproj_kernel\n.p2align 8\n.type oproj_kernel,@function\n"
    s += o.text()
    s += """.section .rodata,"a"
.p2align 6
.amdhsa_kernel standalone__mha_block_cached__near_ridge_kernel
  .amdhsa_next_free_vgpr 512
  .amdhsa_next_free_sgpr 96
  .amdhsa_accum_offset 256
  .amdhsa_group_segment_fixed_size 0
  .amdhsa_kernarg_size 64
  .amdhsa_user_sgpr_count 2
  .amdhsa_user_sgpr_kernarg_segment_ptr 1
  .amdhsa_system_sgpr_workgroup_id_x 1
.end_amdhsa_kernel
.p2align 6
.amdhsa_kernel oproj_kernel
  .amdhsa_next_free_vgpr 256
  .amdhsa_next_free_sgpr 96
  .amdhsa_accum_offset 256
  .amdhsa_group_segment_fixed_size 0
  .amdhsa_kernarg_size 64
  .amdhsa_user_sgpr_count 2
  .amdhsa_user_sgpr_kernarg_segment_ptr 1
  .amdhsa_system_sgpr_workgroup_id_x 1
.end_amdhsa_kernel
"""
    out = sys.argv[1] if len(sys.argv) > 1 else "standalone__mha_block_cached__near_ridge.s"
    open(out, "w").write(s)
    print("attn counts", a.count, "nops", a.nops)
    print("oproj counts", o.count, "nops", o.nops)

main()
```

```python
import sys, math
sys.path.insert(0, 'gen')
from asmlib import *

C1 = math.log2(math.e) / 16.0
import os
DBG = int(os.environ.get('DBG','0'))
DBGWG = int(os.environ.get('DBGWG','37'))
KRATE = int(os.environ.get('KRATE','2'))
K0 = int(os.environ.get('K0','8'))
SPACE = float(os.environ.get('SPACE','0.046'))
PVSP = int(os.environ.get('PVSP','4'))
EXPSP = int(os.environ.get('EXPSP','2'))
NOWQ = int(os.environ.get('NOWQ','0'))
NOXR = int(os.environ.get('NOXR','0'))
NOPERM = int(os.environ.get('NOPERM','0'))
KFLAGS = os.environ.get('KFLAGS',' nt')
OSTF = os.environ.get('OSTF','')
OLDF = os.environ.get('OLDF','')
WOF = os.environ.get('WOF','')
WQF = os.environ.get('WQF','')
XF = os.environ.get('XF','')
LDS_MX = 147456
LDS_SUM = LDS_MX + 2304
LDS_OST = LDS_SUM + 2304
LDS1 = LDS_OST + 8192

def add_stamp(k, sb=64):
    k.nst = 0
    def stamp():
        if not DBG: return
        k.raw("s_memtime s[62:63]")
        k.raw("s_waitcnt lgkmcnt(0)")
        k.raw(f"s_mov_b32 s{sb+k.nst}, s62")
        k.nst += 1
    k.stamp = stamp
    def dump(waveS, base):
        if not DBG: return
        k.raw(f"s_cmp_lg_u32 s2, {DBGWG}")
        k.raw(f"s_cbranch_scc1 L_nodump{base}")
        k.raw(f"s_cmp_lg_u32 {waveS}, 0")
        k.raw(f"s_cbranch_scc1 L_nodump{base}")
        k.raw(f"s_load_dwordx2 s[60:61], s[0:1], {56 if base == 0 else 48}")
        k.raw("s_load_dwordx2 s[56:57], s[0:1], 56")
        k.raw("s_waitcnt lgkmcnt(0)")
        k.raw(f"v_mov_b32 v1, 0")
        if base == 0:
            k.raw("s_add_u32 s60, s60, 0x4000000")
            k.raw("s_addc_u32 s61, s61, 0")
        k.raw("s_mov_b32 s62, 256")
        k.raw("s_mov_b32 s63, 0x20000")
        for i in range(k.nst):
            k.raw(f"s_sub_u32 s58, s{sb+i}, s{sb}")
            k.raw(f"v_mov_b32 v2, s58")
            k.raw(f"buffer_store_dword v2, v1, s[60:63], 0 offen offset:{(0 if base == 0 else 12)*4 + i*4}")
        if base != 0:
            k.raw("s_add_u32 s56, s56, 0x4000000")
            k.raw("s_addc_u32 s57, s57, 0")
            k.raw("s_mov_b32 s58, 256")
            k.raw("s_mov_b32 s59, 0x20000")
            for i in range(3):
                k.raw(f"buffer_load_dwordx4 v[4:7], v1, s[56:59], 0 offen offset:{i*16}")
                k.raw("s_waitcnt vmcnt(0)")
                k.raw(f"buffer_store_dwordx4 v[4:7], v1, s[60:63], 0 offen offset:{i*16}")
                k.raw("s_waitcnt vmcnt(0)")
        k.raw("s_waitcnt vmcnt(0)")
        k.label(f"L_nodump{base}")
    k.dump = dump

def gen_attn():
    k = Asm()
    add_stamp(k)
    e = k.raw
    k.label("standalone__mha_block_cached__near_ridge_kernel")
    e("s_cmp_ge_u32 s2, 256")
    e("s_cbranch_scc1 L_attn_end")
    k.stamp()
    e("s_load_dwordx8 s[36:43], s[0:1], 0")
    e("s_load_dwordx2 s[44:45], s[0:1], 56")
    e("s_load_dwordx2 s[88:89], s[0:1], 32")
    e("v_and_b32 v1, 63, v0")
    e("v_and_b32 v2, 15, v0")
    e("v_lshrrev_b32 v3, 4, v1")
    e("v_lshrrev_b32 v27, 6, v0")
    e("s_lshr_b32 s6, s2, 3")
    e("s_and_b32 s7, s2, 7")
    e("s_and_b32 s4, s7, 3")
    e("s_lshl_b32 s4, s4, 2")
    e("s_and_b32 s3, s6, 3")
    e("s_add_u32 s4, s4, s3")
    e("s_lshr_b32 s3, s7, 2")
    e("s_lshl_b32 s3, s3, 3")
    e("s_lshr_b32 s6, s6, 2")
    e("s_add_u32 s3, s3, s6")
    e("s_lshl_b32 s7, s3, 4")
    e("s_add_u32 s7, s7, s4")
    e("v_readfirstlane_b32 s5, v27")
    e("s_mov_b32 s33, " + f32hex(C1))
    e("s_mov_b32 s34, 0x05040100")
    e("s_mov_b32 s35, 0x07060302")
    e("v_lshrrev_b32 v28, 1, v3")
    e("v_xor_b32 v29, v3, v28")
    e("v_and_b32 v29, 1, v29")
    e("v_lshl_or_b32 v29, v29, 1, v28")
    e("v_and_b32 v30, 3, v1")
    e("v_xor_b32 v29, v29, v30")
    e("v_lshrrev_b32 v30, 2, v1")
    e("v_mul_u32_u24 v4, 896, v30")
    e("v_lshl_add_u32 v4, v29, 4, v4")
    e("v_lshl_add_u32 v4, v27, 6, v4")
    e("v_lshrrev_b32 v30, 2, v2")
    e("v_lshrrev_b32 v28, 1, v30")
    e("v_xor_b32 v29, v30, v28")
    e("v_and_b32 v29, 1, v29")
    e("v_lshl_or_b32 v29, v29, 1, v28")
    e("v_xor_b32 v29, v29, v3")
    e("v_lshlrev_b32 v5, 6, v2")
    e("v_lshl_add_u32 v5, v29, 4, v5")
    e("v_add_u32 v6, 0x10000, v5")
    e("v_and_b32 v28, 7, v2")
    e("v_lshlrev_b32 v7, 4, v28")
    e("v_lshl_add_u32 v7, v3, 16, v7")
    e("v_lshrrev_b32 v28, 3, v2")
    e("v_lshl_add_u32 v7, v28, 15, v7")
    e("s_mov_b32 s82, 0xff00ff00")
    e("s_mov_b32 s83, 0xff00ff00")
    e("v_lshrrev_b32 v28, 1, v3")
    e("v_xor_b32 v29, v3, v28")
    e("v_and_b32 v29, 1, v29")
    e("v_lshl_or_b32 v29, v29, 1, v28")
    e("v_and_b32 v30, 3, v1")
    e("v_xor_b32 v29, v29, v30")
    e("v_lshrrev_b32 v30, 2, v1")
    e("v_lshlrev_b32 v8, 9, v30")
    e("v_lshl_add_u32 v8, v29, 4, v8")
    e("v_lshlrev_b32 v0, 4, v1")
    e("v_lshl_add_u32 v0, v27, 12, v0")
    e(f"v_add_u32 v0, {73728}, v0")
    e("v_lshlrev_b32 v9, 3, v2")
    e("v_lshl_add_u32 v9, v3, 12, v9")
    e("v_xor_b32 v28, v3, v2")
    e("v_lshlrev_b32 v28, 4, v28")
    e("v_lshl_add_u32 v18, v2, 9, v28")
    e("v_lshl_add_u32 v23, v2, 10, v28")
    e("v_lshrrev_b32 v28, 1, v3")
    e("v_xor_b32 v28, v28, v2")
    e("v_lshlrev_b32 v28, 4, v28")
    e("v_lshl_add_u32 v21, v2, 10, v28")
    e("v_lshl_add_u32 v21, v27, 8, v21")
    e("v_and_b32 v28, 1, v3")
    e("v_lshl_add_u32 v21, v28, 3, v21")
    e("s_lshl_b32 s28, s5, 10")
    e("s_lshl_b32 s29, s4, 9")
    e("s_lshl_b32 s6, s5, 7")
    e("s_add_u32 s29, s29, s6")
    e("s_lshl_b32 s30, s5, 16")
    e("s_mov_b32 s31, s6")
    e("s_mul_i32 s32, s3, 1179648")
    e("s_lshl_b32 s6, s4, 13")
    e("s_add_u32 s32, s32, s6")
    e("s_lshl_b32 s6, s5, 11")
    e("s_add_u32 s32, s32, s6")
    for t in range(8):
        e(f"s_add_u32 s{48+t}, s30, {t*8192}")
    e("s_waitcnt lgkmcnt(0)")
    e("s_mul_i32 s6, s3, 129024")
    e("s_add_u32 s8, s36, s6")
    e("s_addc_u32 s9, s37, 0")
    e("s_mov_b32 s10, 129024")
    e("s_mov_b32 s11, 0x20000")
    e("s_mov_b32 s12, s42")
    e("s_mov_b32 s13, s43")
    e("s_mov_b32 s14, 3670016")
    e("s_mov_b32 s15, 0x20000")
    e("s_lshl_b32 s6, s7, 18")
    e("s_add_u32 s16, s38, s6")
    e("s_addc_u32 s17, s39, 0")
    e("s_mov_b32 s18, 262144")
    e("s_mov_b32 s19, 0x20000")
    e("s_add_u32 s20, s40, s6")
    e("s_addc_u32 s21, s41, 0")
    e("s_mov_b32 s22, 262144")
    e("s_mov_b32 s23, 0x20000")
    e("s_mov_b32 s24, s44")
    e("s_mov_b32 s25, s45")
    e("s_mov_b32 s26, 18874368")
    e("s_mov_b32 s27, 0x20000")
    e("s_mov_b32 s90, 3670016")
    e("s_mov_b32 s91, 0x20000")
    e("s_add_u32 s84, s44, 33554432")
    e("s_addc_u32 s85, s45, 0")
    e("s_mov_b32 s86, 3670016")
    e("s_mov_b32 s87, 0x20000")
    SX, SWQ, SK, SV, SO = "s[8:11]", "s[12:15]", "s[16:19]", "s[20:23]", "s[24:27]"

    def dma(sp, m):
        e(f"s_add_u32 m0, s28, {m*14336 + sp*4096}")
        e(f"s_mov_b32 s46, {m*14336 + sp*256}")
        return k.vdma(V(4), SX, "s46", flags=XF)
    e("s_cmp_ge_u32 s5, 2")
    e("s_cbranch_scc1 L_skipdma")
    for m in range(9):
        dma(3, m)
    k.label("L_skipdma")

    NW = 4
    WRAW = lambda st, j: V(32 + st*16 + j*2, 2)
    WFR = lambda st, t: V(96 + st*16 + t*4, 4)
    FR = lambda m: V(176 + m*4, 4)
    ACCQ = lambda m, t: A((m*4+t)*4, 4)
    VB_A = [V(128 + 4*i, 4) for i in range(12)]
    VB_B = [V(212 + 4*i, 4) for i in range(8)]
    AR = [A(144 + 4*i, 4) for i in range(28)]
    init_slots = VB_A + VB_B + AR
    stmp = [46, 47, 58, 59]
    sidx = [0]
    def stemp():
        sidx[0] = (sidx[0] + 1) % len(stmp)
        return stmp[sidx[0]]

    wq_tok = {}
    def wq_loads(s):
        fl = []
        for i in range(4):
            def f(i=i):
                st = stemp()
                e(f"s_add_u32 s{st}, s29, {(32*s+i)*8192}")
                wq_tok[s] = k.vload("buffer_load_dwordx4", V(32 + (s % NW)*16 + i*4, 4), V(7), SWQ, f"s{st}", flags=WQF)
            fl.append(f)
        return fl
    def wq_fill(s):
        R = lambda i, q: V(32 + (s % NW)*16 + i*4 + q)
        S_ = lambda i, q: V(244 + i*2 + q)
        o = lambda t: WFR(s % 2, t)[1]
        fl = []
        for i in range(4):
            for q in range(2):
                fl.append(lambda i=i, q=q: k.valu("v_cndmask_b32", S_(i, q), R(i, 2+q), R(i, q), "s[82:83]"))
        for i in range(4):
            for q in range(2):
                fl.append(lambda i=i, q=q: k.valu("v_mov_b32_dpp", S_(i, q), S_(i, q), permlane=True, mods=" row_ror:8 row_mask:0xf bank_mask:0xf"))
        for i in range(4):
            for q in range(2):
                fl.append(lambda i=i, q=q: k.valu("v_cndmask_b32", R(i, q), R(i, q), S_(i, q), "s[82:83]"))
                fl.append(lambda i=i, q=q: k.valu("v_cndmask_b32", R(i, 2+q), S_(i, q), R(i, 2+q), "s[82:83]"))
        for t in range(4):
            sel = "s35" if (t & 1) else "s34"
            q = t >> 1
            fl.append(lambda t=t, q=q, sel=sel: k.valu("v_perm_b32", V(o(t)+0), R(1, q), R(0, q), sel))
            fl.append(lambda t=t, q=q, sel=sel: k.valu("v_perm_b32", V(o(t)+1), R(3, q), R(2, q), sel))
            fl.append(lambda t=t, q=q, sel=sel: k.valu("v_perm_b32", V(o(t)+2), R(1, 2+q), R(0, 2+q), sel))
            fl.append(lambda t=t, q=q, sel=sel: k.valu("v_perm_b32", V(o(t)+3), R(3, 2+q), R(2, 2+q), sel))
        return fl
    def issue_wq(s):
        for f in wq_loads(s): f()
    mem = []
    k_tok = {}
    k_slot = {}
    k_next = [0]
    korder = [(2*sp + ee, t) for sp in range(4) for t in range(4, 8) for ee in range(2)] + \
             [(2*sp + ee, t) for sp in range(4) for t in range(0, 4) for ee in range(2)]
    def issue_k(slot):
        s_, t = korder[k_next[0]]; k_next[0] += 1
        i = s_*8 + t
        k_slot[i] = slot
        k_tok[i] = k.vload("buffer_load_dwordx4", slot, V(8), SK, f"s{48+t}", offset=s_*64, flags=KFLAGS)
    kp_tok = {}
    ksc = [0]
    def kperm(i):
        while i not in k_tok: mem.pop(0)()
        k.wait_vm(k_tok[i])
        sl = k_slot[i]
        off = (ksc[0] % 4) * 1024; ksc[0] += 1
        k.dswrite("ds_write_b128", V(0), sl, off)
        kp_tok[i] = k.dsread("ds_read_b128", sl, V(5), off)
    v_tok = {}
    v_reg = {}
    v_cnt = {}
    def v_loads(u, regs):
        v_reg[u] = regs
        v_cnt[u] = 0
        fl = []
        for j in range(8):
            def f(j=j):
                st = stemp()
                e(f"s_add_u32 s{st}, s31, {u*16384}")
                v_tok[u] = k.vload("buffer_load_dwordx2", regs[j], V(9), SV, f"s{st}", offset=j*512, flags=KFLAGS)
                v_cnt[u] += 1
            f.kb = 0.5
            fl.append(f)
        return fl
    def issue_v(u, regs):
        for f in v_loads(u, regs): f()

    def perm_fill(raws, out):
        fl = []
        for t in range(4):
            for i in range(4):
                hi = raws[2*i+1]; lo = raws[2*i]
                def f(t=t, i=i, hi=hi, lo=lo):
                    o = out(t)
                    k.valu("v_perm_b32", V(o[1]+i), V(hi[1] + (t >> 1)), V(lo[1] + (t >> 1)), "s35" if (t & 1) else "s34")
                fl.append(f)
        return fl

    xtok = {}
    ring_next = 0
    for m in range(9): xtok[0] = dma(0, m)
    issue_wq(0); issue_wq(1); issue_wq(2)
    for _ in range(K0):
        issue_k(init_slots[ring_next]); ring_next += 1
    k.wait_vm(xtok[0])
    k.barrier()
    k.stamp()

    def xread(m, s):
        off = (m*14 + s) * 1024
        if off < 65536: return k.dsread("ds_read_b128", FR(m), V(5), off)
        return k.dsread("ds_read_b128", FR(m), V(6), off - 65536)
    fr_tok = {}
    for m in range(9): fr_tok[m] = xread(m, 0)
    k.wait_vm(wq_tok[0])
    for f in wq_fill(0): f()
    mem = []
    def dma_f(sp, m):
        def f(): xtok[sp] = dma(sp, m)
        return f
    def k_f():
        nonlocal ring_next
        if ring_next < len(init_slots):
            issue_k(init_slots[ring_next]); ring_next += 1
    mem += [dma_f(1, m) for m in range(9)] + [dma_f(2, m) for m in range(9)]
    for s in range(14):
        if s in (3, 7):
            k.wait_vm(xtok[(s+1)//4])
            k.barrier()
        if s + 3 < 14: mem = wq_loads(s+3) + mem
        mem += [k_f] * KRATE
        fill = []
        if s + 1 < 14:
            fill.append(lambda s=s: k.wait_vm(wq_tok[s+1]))
            fill += wq_fill(s+1)
        n = 0
        for m in range(9):
            k.wait_lg(fr_tok[m])
            for t in range(4):
                k.mfma(ACCQ(m, t), FR(m), WFR(s % 2, t), ACCQ(m, t) if s else 0)
                if n % 2 == 0 and mem: mem.pop(0)()
                if n >= 6:
                    for _ in range(2):
                        if fill: fill.pop(0)()
                n += 1
            if s + 1 < 14: fr_tok[m] = xread(m, s+1)
        while fill: fill.pop(0)()
    while mem: mem.pop(0)()
    k.stamp()
    while ring_next < len(init_slots):
        issue_k(init_slots[ring_next]); ring_next += 1
    k.stamp()
    k.barrier()
    k.valu("v_and_b32", V(28), 1, V(27))
    k.valu("v_lshlrev_b32", V(28), 3, V(28))
    k.valu("v_and_b32", V(29), 7, V(2))
    k.valu("v_add_u32", V(28), V(28), V(29))
    k.valu("v_lshrrev_b32", V(29), 1, V(27))
    k.valu("v_lshlrev_b32", V(29), 8, V(29))
    k.valu("v_lshrrev_b32", V(30), 3, V(2))
    k.valu("v_lshl_add_u32", V(29), V(30), 3, V(29))
    for r in range(4):
        k.valu("v_lshl_add_u32", V(30), V(3), 2, r)
        k.valu("v_xor_b32", V(31), V(28), V(30))
        k.valu("v_lshl_add_u32", V(10+r), V(31), 4, V(29))
        k.valu("v_lshl_add_u32", V(10+r), V(30), 9, V(10+r))
        k.valu("v_add_u32", V(14+r), 32768, V(10+r))
    tb = 244
    for m in range(9):
        for r in range(4):
            T = tb + ((m*4 + r) % 2) * 6
            for t in range(4):
                k.valu("v_accvgpr_read_b32", V(T+t), A((m*4+t)*4 + r))
            k.valu("v_cvt_pk_bf16_f32", V(T+4), V(T), V(T+1))
            k.valu("v_cvt_pk_bf16_f32", V(T+5), V(T+2), V(T+3))
            if m < 4: k.dswrite("ds_write_b64", V(10+r), V(T+4, 2), m*8192)
            else: k.dswrite("ds_write_b64", V(14+r), V(T+4, 2), (m-4)*8192)
    k.wait_lg_all()
    k.barrier()
    k.stamp()

    def ACCS(t, m):
        if t < 4: return V(32 + (m*4 + t)*4, 4)
        return A((m*4 + (t-4))*4, 4)
    def qaddr(s):
        k.valu("v_xor_b32", V(19), (s & 3) << 6, V(18))
        k.valu("v_add_u32", V(20), 65536, V(19))
    def qread(m, s):
        off = m*8192 + (s >> 2)*256
        if off < 65536: return k.dsread("ds_read_b128", FR(m), V(19), off)
        return k.dsread("ds_read_b128", FR(m), V(20), off - 65536)
    k.valu("v_lshl_add_u32", V(5), V(27), 12, V(5))
    k.valu("v_add_u32", V(5), 73728, V(5))
    seq = [(p, s_) for p in (0, 1) for s_ in range(8)]
    tiles = lambda p: range(4, 8) if p == 0 else range(0, 4)
    qaddr(0)
    for t in tiles(0): kperm(t)
    for m in range(9): fr_tok[m] = qread(m, 0)
    v_next = 0
    vfree = []
    mem = []
    kq = k_next[0]
    k.valu("v_mul_u32_u24", V(28), 28, V(27))
    k.valu("v_add_u32", V(28), V(28), V(1))
    k.valu("v_cmp_le_u32", "vcc", 56, V(28))
    k.raw("s_nop 1")
    k.valu("v_cndmask_b32", V(29), 0, 1, "vcc")
    k.valu("v_mul_u32_u24", V(30), 56, V(29))
    k.valu("v_sub_u32", V(28), V(28), V(30))
    k.valu("v_mul_u32_u24", V(30), 7168, V(29))
    k.valu("v_lshl_add_u32", V(96), V(28), 4, V(30))
    e("s_mul_i32 s92, s2, 14336")
    e("s_add_u32 s93, s92, 3584")
    k.valu("v_lshrrev_b32", V(30), 3, V(28))
    k.valu("v_lshlrev_b32", V(97), 12, V(30))
    k.valu("v_and_b32", V(30), 7, V(28))
    k.valu("v_lshl_add_u32", V(97), V(30), 5, V(97))
    k.valu("v_lshl_add_u32", V(97), V(29), 8, V(97))
    e("s_lshr_b32 s94, s2, 1")
    e("s_mul_i32 s94, s94, 28672")
    e("s_and_b32 s95, s2, 1")
    e("s_lshl_b32 s95, s95, 9")
    e("s_add_u32 s94, s94, s95")
    wo_tok = [None]
    def wo_load(j):
        def f():
            e("s_mov_b64 exec, 0xfffffff")
            wo_tok[0] = k.vload("buffer_load_dwordx4", V(32 + 4*j, 4), V(96), "s[88:91]", "s92" if j < 4 else "s93", offset=(j & 3)*896)
            e("s_mov_b64 exec, -1")
        return f
    wl = [wo_load(j) for j in range(8)]
    for f in wl: f.kb = 0.1
    mem += wl
    def wo_perm(e_, i2):
        return lambda: k.valu("v_perm_b32", V(64 + 4*e_ + i2), V(32 + 4*(2*i2+1) + (e_ >> 1)), V(32 + 4*(2*i2) + (e_ >> 1)), "s35" if (e_ & 1) else "s34")
    def wo_store(e_):
        def f():
            e("s_mov_b64 exec, 0xfffffff")
            k.vstore("buffer_store_dwordx4", V(64 + 4*e_, 4), V(97), "s[84:87]", "s94", offset=(e_ & 3)*1024 + (e_ >> 2)*16)
            e("s_mov_b64 exec, -1")
        return f
    wfill = []
    budget = [0.0]
    for idx, (p, s) in enumerate(seq):
        nxt = seq[idx+1] if idx + 1 < len(seq) else None
        if nxt: qaddr(nxt[1])
        if idx == 5:
            wfill = [lambda: k.wait_vm(wo_tok[0])] + [wo_perm(e_, i2) for e_ in range(8) for i2 in range(4)]
        if idx == 8:
            def mk(m):
                fl = []
                for half in range(2):
                    for q in range(8):
                        t = 4 + half*2 + (q >> 2); r = q & 3
                        fl.append(lambda t=t, r=r, q=q, m=m: k.valu("v_accvgpr_read_b32", V(10+q), A(ACCS(t, m)[1] + r)))
                    if half == 0:
                        fl.append(lambda m=m: k.valu("v_max3_f32", V(244+m), V(10), V(11), V(12)))
                    else:
                        fl.append(lambda m=m: k.valu("v_max3_f32", V(244+m), V(10), V(11), V(244+m)))
                        fl.append(lambda m=m: k.valu("v_max_f32", V(244+m), V(12), V(244+m)))
                    fl.append(lambda m=m: k.valu("v_max3_f32", V(244+m), V(13), V(14), V(244+m)))
                    fl.append(lambda m=m: k.valu("v_max3_f32", V(244+m), V(15), V(16), V(244+m)))
                    fl.append(lambda m=m: k.valu("v_max_f32", V(244+m), V(17), V(244+m)))
                return fl
            for m_ in range(9): wfill += mk(m_)
        if idx == 6:
            ws_ = [wo_store(e_) for e_ in range(8)]
            for f in ws_: f.kb = 0.1
            mem = ws_ + mem
        n = 0
        for m in range(9):
            k.wait_lg(fr_tok[m])
            for t in tiles(p):
                i = s*8 + t
                k.wait_lg(kp_tok[i])
                k.mfma(ACCS(t, m), k_slot[i], FR(m), ACCS(t, m) if s else 0)
                budget[0] += SPACE
                while mem and budget[0] >= getattr(mem[0], 'kb', 1.0):
                    budget[0] -= getattr(mem[0], 'kb', 1.0); mem.pop(0)()
                if wfill: wfill.pop(0)()
                n += 1
            if nxt:
                fr_tok[m] = qread(m, nxt[1])
                if 4 <= m < 8: kperm(nxt[1]*8 + list(tiles(nxt[0]))[m-4])
        for t in tiles(p):
            sl = k_slot[s*8 + t]
            if sl in VB_A: continue
            if kq < 64:
                mem.append(lambda sl=sl: issue_k(sl)); kq += 1
            elif sl in AR: vfree.append(sl)
        while len(vfree) >= 4 and v_next < 7:
            sls = vfree[:4]; vfree = vfree[4:]
            regs = []
            for sl in sls:
                regs += [A(sl[1], 2), A(sl[1] + 2, 2)]
            mem += v_loads(v_next, regs); v_next += 1
    assert v_next == 7, v_next
    while wfill: wfill.pop(0)()

    k.stamp()
    NEGM = lambda m: V(212 + 2*m)
    PSUM = lambda m: V(176 + 2*m, 2)
    e("s_mov_b32 s80, s33")
    e("s_mov_b32 s81, s33")
    k.valu("v_lshlrev_b32", V(28), 4, V(2))
    k.valu("v_lshl_add_u32", V(28), V(27), 2, V(28))
    k.valu("v_add_u32", V(28), LDS_MX, V(28))
    k.valu("v_lshlrev_b32", V(29), 4, V(2))
    k.valu("v_add_u32", V(29), LDS_MX, V(29))
    for m in range(9):
        mx = NEGM(m); m2 = V(213 + 2*m)
        vals = []
        for t in range(4):
            b_ = ACCS(t, m)[1]
            vals += [V(b_+r) for r in range(4)]
        k.valu("v_max3_f32", mx, vals[0], vals[1], V(244 + m))
        k.valu("v_max3_f32", m2, vals[2], vals[3], vals[4])
        k.valu("v_max3_f32", mx, vals[5], vals[6], mx)
        k.valu("v_max3_f32", m2, vals[7], vals[8], m2)
        k.valu("v_max3_f32", mx, vals[9], vals[10], mx)
        k.valu("v_max3_f32", m2, vals[11], vals[12], m2)
        k.valu("v_max3_f32", mx, vals[13], vals[14], mx)
        k.valu("v_max3_f32", mx, vals[15], m2, mx)
    for m in range(9):
        mx = NEGM(m); tm = V(213 + 2*m)
        k.valu("v_mov_b32", tm, mx)
    for m in range(9):
        mx = NEGM(m); tm = V(213 + 2*m)
        k.valu("v_permlane32_swap_b32", tm, mx, permlane=True, extra_w=(mx,))
    for m in range(9):
        mx = NEGM(m); tm = V(213 + 2*m)
        k.valu("v_max_f32", mx, tm, mx)
    for m in range(9):
        mx = NEGM(m); tm = V(213 + 2*m)
        k.valu("v_mov_b32", tm, mx)
    for m in range(9):
        mx = NEGM(m); tm = V(213 + 2*m)
        k.valu("v_permlane16_swap_b32", tm, mx, permlane=True, extra_w=(mx,))
    for m in range(9):
        mx = NEGM(m); tm = V(213 + 2*m)
        k.valu("v_max_f32", mx, tm, mx)
        k.dswrite("ds_write_b32", V(28), mx, m*256)
        if mem: mem.pop(0)()
    k.wait_lg_all()
    k.barrier()
    k.stamp()
    toks = []
    for m in range(9):
        toks.append(k.dsread("ds_read_b128", V(176 + m*4, 4), V(29), m*256))
    k.valu("v_mov_b32", V(231), "s33")
    for m in range(9):
        k.wait_lg(toks[m])
        T = 176 + m*4
        k.valu("v_max3_f32", NEGM(m), V(T), V(T+1), V(T+2))
        k.valu("v_max_f32", NEGM(m), V(T+3), NEGM(m))
    for m in range(9):
        k.valu("v_mul_f32", NEGM(m), V(231), NEGM(m))
    for m in range(9):
        k.valu("v_sub_f32", NEGM(m), 0, NEGM(m))
    tl = [(m, t) for m in range(9) for t in range(8)]
    def sregs(n):
        m, t = tl[n]
        if t < 4: return ACCS(t, m)[1]
        return 196 + (n % 4)*4
    def stageA(n):
        m, t = tl[n]; S = sregs(n)
        if t >= 4:
            ab = ACCS(t, m)[1]
            for r in range(4):
                k.valu("v_accvgpr_read_b32", V(S+r), A(ab+r))
        for h_ in range(2):
            k.valu("v_pk_fma_f32", V(S+2*h_, 2), V(S+2*h_, 2), "s[80:81]", V(NEGM(m)[1], 2), mods=" op_sel_hi:[1,1,0]")
        for r in range(4):
            k.valu("v_exp_f32", V(S+r), V(S+r), trans=True)
    def stageB(n):
        m, t = tl[n]; S = sregs(n)
        if t == 0:
            if m == 0: k.valu("v_mov_b32", V(22), V(21))
            else: k.valu("v_add_u32", V(22), m*16384, V(21))
        P = 232 + (n % 4)*2
        AD = 240 + (n % 4)
        k.valu("v_xor_b32", V(AD), t << 5, V(22))
        k.valu("v_cvt_pk_bf16_f32", V(P), V(S), V(S+1))
        k.valu("v_cvt_pk_bf16_f32", V(P+1), V(S+2), V(S+3))
        if t == 0:
            k.valu("v_pk_add_f32", PSUM(m), V(S, 2), V(S+2, 2))
        else:
            k.valu("v_pk_add_f32", PSUM(m), V(S, 2), PSUM(m))
            k.valu("v_pk_add_f32", PSUM(m), V(S+2, 2), PSUM(m))
        k.dswrite("ds_write_b64", V(AD), V(P, 2))
        if mem and n % EXPSP == 0: mem.pop(0)()
        if t == 7:
            mem.extend(v_loads(7 + m, [V(32 + m*16 + 2*j, 2) for j in range(8)]))
    stageA(0)
    for n in range(len(tl)):
        if n + 1 < len(tl): stageA(n+1)
        stageB(n)
    k.valu("v_mul_u32_u24", V(28), 576, V(27))
    k.valu("v_lshl_add_u32", V(28), V(2), 2, V(28))
    k.valu("v_add_u32", V(28), LDS_SUM, V(28))
    for m in range(9):
        b_ = PSUM(m)[1]
        k.valu("v_add_f32", V(b_), V(b_), V(b_+1))
    for m in range(9):
        b_ = PSUM(m)[1]
        k.valu("v_mov_b32", V(b_+1), V(b_))
    for m in range(9):
        b_ = PSUM(m)[1]
        k.valu("v_permlane32_swap_b32", V(b_+1), V(b_), permlane=True, extra_w=(V(b_),))
    for m in range(9):
        b_ = PSUM(m)[1]
        k.valu("v_add_f32", V(b_), V(b_+1), V(b_))
    for m in range(9):
        b_ = PSUM(m)[1]
        k.valu("v_mov_b32", V(b_+1), V(b_))
    for m in range(9):
        b_ = PSUM(m)[1]
        k.valu("v_permlane16_swap_b32", V(b_+1), V(b_), permlane=True, extra_w=(V(b_),))
    for m in range(9):
        b_ = PSUM(m)[1]
        k.valu("v_add_f32", V(b_), V(b_+1), V(b_))
        k.dswrite("ds_write_b32", V(28), V(b_), m*64)
    k.wait_lg_all()
    k.barrier()
    k.stamp()

    ACCO = lambda m, t: A((m*4+t)*4, 4)
    VFR = lambda st, t: V(212 + st*16 + t*4, 4)
    def paddr(u):
        k.valu("v_xor_b32", V(24), (u & 3) << 6, V(23))
        k.valu("v_add_u32", V(25), 65536, V(24))
        k.valu("v_add_u32", V(26), 131072, V(24))
    def pread(m, u):
        off = m*16384 + (u >> 2)*256
        return k.dsread("ds_read_b128", FR(m), V(24 + off // 65536), off % 65536)
    def vprep(u):
        fl = [lambda: k.wait_vm(v_tok[u])]
        regs = v_reg[u]
        if regs[0][0] == 'a':
            tmp = [244, 246, 248, 250, 252, 254, 10, 12]
            for j in range(8):
                for q in range(2):
                    fl.append(lambda j=j, q=q: k.valu("v_accvgpr_read_b32", V(tmp[j]+q), A(regs[j][1]+q)))
            raws = [V(tmp[j], 2) for j in range(8)]
        else:
            raws = regs
        fl += perm_fill(raws, lambda t: VFR(u % 2, t))
        return fl
    paddr(0)
    for m in range(9): fr_tok[m] = pread(m, 0)
    while v_cnt[0] < 8: mem.pop(0)()
    for f in vprep(0): f()
    for u in range(16):
        fill = []
        if u + 1 < 16:
            paddr(u+1)
            while v_cnt[u+1] < 8: mem.pop(0)()
            fill = vprep(u+1)
        n = 0
        for m in range(9):
            k.wait_lg(fr_tok[m])
            for t in range(4):
                k.mfma(ACCO(m, t), FR(m), VFR(u % 2, t), ACCO(m, t) if u else 0)
                if fill: fill.pop(0)()
                if n % PVSP == PVSP-1 and mem: mem.pop(0)()
                n += 1
            if u + 1 < 16: fr_tok[m] = pread(m, u+1)
        while fill: fill.pop(0)()
    assert not mem

    k.stamp()
    k.valu("v_lshlrev_b32", V(28), 4, V(3))
    k.valu("v_add_u32", V(28), LDS_SUM, V(28))
    for m in range(9):
        for w in range(4):
            k.dsread("ds_read_b128", V(32 + (m*4+w)*4, 4), V(28), w*576 + m*64)
    k.valu("v_lshrrev_b32", V(29), 1, V(2))
    k.valu("v_lshlrev_b32", V(30), 2, V(3))
    k.valu("v_xor_b32", V(30), V(30), V(29))
    k.valu("v_lshlrev_b32", V(30), 4, V(30))
    k.valu("v_lshl_add_u32", V(30), V(29), 8, V(30))
    k.valu("v_and_b32", V(29), 1, V(2))
    k.valu("v_lshl_add_u32", V(30), V(29), 3, V(30))
    k.valu("v_lshl_add_u32", V(30), V(27), 11, V(30))
    k.valu("v_add_u32", V(10), LDS_OST, V(30))
    for r in range(1, 4):
        k.valu("v_xor_b32", V(10+r), r << 4, V(10))
    k.valu("v_xor_b32", V(30), V(2), V(3))
    k.valu("v_lshlrev_b32", V(30), 4, V(30))
    k.valu("v_lshl_add_u32", V(30), V(3), 8, V(30))
    k.valu("v_lshl_add_u32", V(30), V(27), 11, V(30))
    k.valu("v_add_u32", V(14), LDS_OST, V(30))
    k.valu("v_xor_b32", V(15), 64, V(14))
    k.valu("v_lshlrev_b32", V(16), 4, V(1))
    k.wait_lg_all()
    for m in range(9):
        b = 32 + m*16
        for r in range(4):
            k.valu("v_add_f32", V(b+r), V(b+r), V(b+4+r))
            k.valu("v_add_f32", V(b+8+r), V(b+8+r), V(b+12+r))
        for r in range(4):
            k.valu("v_add_f32", V(b+r), V(b+r), V(b+8+r))
        for r in range(4):
            k.valu("v_rcp_f32", V(b+r), V(b+r), trans=True)
    pend = None
    for m in range(9):
        b = 32 + m*16
        for r in range(4):
            T = 176 + ((m*4 + r) % 4) * 6
            for t in range(4):
                k.valu("v_accvgpr_read_b32", V(T+t), A((m*4+t)*4 + r))
            for t in range(4):
                k.valu("v_mul_f32", V(T+t), V(T+t), V(b+r))
            k.valu("v_cvt_pk_bf16_f32", V(T+4), V(T), V(T+1))
            k.valu("v_cvt_pk_bf16_f32", V(T+5), V(T+2), V(T+3))
            k.dswrite("ds_write_b64", V(10+r), V(T+4, 2))
        RB = 212 + (m % 2)*8
        t0 = k.dsread("ds_read_b128", V(RB, 4), V(14))
        t1 = k.dsread("ds_read_b128", V(RB+4, 4), V(15), 1024)
        if pend is not None:
            pm, pRB, pt1 = pend
            k.wait_lg(pt1)
            st = stemp()
            e(f"s_add_u32 s{st}, s32, {pm*131072}")
            k.vstore("buffer_store_dwordx4", V(pRB, 4), V(16), SO, f"s{st}", flags=OSTF)
            k.vstore("buffer_store_dwordx4", V(pRB+4, 4), V(16), SO, f"s{st}", offset=1024, flags=OSTF)
        pend = (m, RB, t1)
    pm, pRB, pt1 = pend
    k.wait_lg(pt1)
    st = stemp()
    e(f"s_add_u32 s{st}, s32, {pm*131072}")
    k.vstore("buffer_store_dwordx4", V(pRB, 4), V(16), SO, f"s{st}", flags=OSTF)
    k.vstore("buffer_store_dwordx4", V(pRB+4, 4), V(16), SO, f"s{st}", offset=1024, flags=OSTF)
    k.stamp()
    k.wait_vm_all()
    k.stamp()
    k.dump("s5", 0)
    k.label("L_attn_end")
    e("s_endpgm")
    return k

def gen_oproj():
    k = Asm()
    add_stamp(k, 84)
    e = k.raw
    k.label("oproj_kernel")
    e("s_cmp_ge_u32 s2, 256")
    e("s_cbranch_scc1 L_op_end")
    e("s_and_b32 s3, s2, 7")
    e("s_lshl_b32 s3, s3, 5")
    e("s_lshr_b32 s4, s2, 3")
    e("s_add_u32 s3, s3, s4")
    e("s_cmp_ge_u32 s3, 252")
    e("s_cbranch_scc1 L_op_end")
    k.stamp()
    e("s_load_dwordx4 s[36:39], s[0:1], 32")
    e("s_load_dwordx2 s[40:41], s[0:1], 56")
    e("s_mul_i32 s4, s3, 9363")
    e("s_lshr_b32 s4, s4, 16")
    e("s_mul_i32 s5, s4, 7")
    e("s_sub_u32 s5, s3, s5")
    e("v_and_b32 v1, 63, v0")
    e("v_and_b32 v2, 15, v0")
    e("v_lshrrev_b32 v3, 4, v1")
    e("v_lshrrev_b32 v4, 6, v0")
    e("s_mov_b32 s34, 0x05040100")
    e("s_mov_b32 s35, 0x07060302")
    e("v_lshlrev_b32 v5, 4, v1")
    e("v_lshl_add_u32 v5, v4, 14, v5")
    e("s_mov_b32 s6, 458752")
    e("v_mul_lo_u32 v6, s6, v4")
    e("v_lshl_add_u32 v6, v1, 4, v6")
    e("s_lshl_b32 s6, s4, 19")
    for m in range(4):
        for q in range(4):
            e(f"s_add_u32 s{64+m*4+q}, s6, {m*131072 + q*4096}")
    e("s_lshl_b32 s7, s5, 7")
    e("s_lshl_b32 s33, s5, 12")
    e("s_waitcnt lgkmcnt(0)")
    e("s_mov_b32 s8, s40"); e("s_mov_b32 s9, s41"); e("s_mov_b32 s10, 18874368"); e("s_mov_b32 s11, 0x20000")
    e("s_add_u32 s12, s40, 33554432"); e("s_addc_u32 s13, s41, 0"); e("s_mov_b32 s14, 3670016"); e("s_mov_b32 s15, 0x20000")
    e("s_mov_b32 s16, s38"); e("s_mov_b32 s17, s39"); e("s_mov_b32 s18, 2064384"); e("s_mov_b32 s19, 0x20000")
    SA, SB, SOUT = "s[8:11]", "s[12:15]", "s[16:19]"
    NS = 5
    AFR = lambda st, m: V(96 + st*32 + m*4, 4)
    BRAW = lambda st, j: V(96 + st*32 + 16 + j*2, 2)
    BFR = lambda st, t: V(16 + st*8*0 + t*4, 4) if False else V(16 + (st % 1)*16 + t*4, 4)
    ACC = lambda m, t: V(32 + (m*4+t)*4, 4)
    tokA = {}; tokB = {}
    sidx = [0]
    def stemp():
        sidx[0] = (sidx[0] + 1) % 4
        return 52 + sidx[0]
    BF = lambda st, t: V(96 + st*32 + 16 + t*4, 4)
    def loads(s):
        st = s % NS
        fl = []
        def fb(t):
            def f():
                if t == 0:
                    loads.sb = stemp()
                    e(f"s_add_u32 s{loads.sb}, s33, {s*28672}")
                tokB[s] = k.vload("buffer_load_dwordx4", BF(st, t), V(6), SB, f"s{loads.sb}", offset=t*1024)
            return f
        def fa(m):
            def f():
                tokA[s] = k.vload("buffer_load_dwordx4", AFR(st, m), V(5), SA, f"s{64+m*4+(s>>2)}", offset=(s&3)*1024, flags=OLDF)
            return f
        return [fb(0), fa(0), fb(1), fa(1), fb(2), fa(2), fb(3), fa(3)]
    for s in range(NS):
        for f in loads(s): f()
    k.stamp()
    for s in range(16):
        st = s % NS
        k.wait_vm(tokA[s])
        for m in range(4):
            for t in range(4):
                k.mfma(ACC(m, t), AFR(st, m), BF(st, t), ACC(m, t) if s else 0)
        if s + NS < 16:
            for f in loads(s + NS): f()
    k.stamp()
    k.valu("v_lshlrev_b32", V(8), 4, V(1))
    k.valu("v_lshl_add_u32", V(8), V(4), 14, V(8))
    for m in range(4):
        for t in range(4):
            k.dswrite("ds_write_b128", V(8), ACC(m, t), (m*4+t)*1024)
    k.wait_lg_all()
    k.barrier()
    k.valu("v_lshrrev_b32", V(9), 1, V(4))
    k.valu("v_and_b32", V(10), 1, V(4))
    k.valu("v_lshlrev_b32", V(8), 4, V(1))
    k.valu("v_lshl_add_u32", V(8), V(9), 12, V(8))
    k.valu("v_lshl_add_u32", V(8), V(10), 3, V(8))
    k.valu("v_add_u32", V(11), 65536, V(8))
    for t in range(4):
        for w in range(8):
            off = w*16384 + t*1024
            k.dsread("ds_read_b64", V(96 + (t*8 + w)*2, 2), V(8) if off < 65536 else V(11), off % 65536)
    k.wait_lg_all()
    for t in range(4):
        b = 96 + t*16
        for q in range(2):
            k.valu("v_add_f32", V(b+q), V(b+q), V(b+2+q))
            k.valu("v_add_f32", V(b+4+q), V(b+4+q), V(b+6+q))
            k.valu("v_add_f32", V(b+8+q), V(b+8+q), V(b+10+q))
            k.valu("v_add_f32", V(b+12+q), V(b+12+q), V(b+14+q))
        for q in range(2):
            k.valu("v_add_f32", V(b+q), V(b+q), V(b+4+q))
            k.valu("v_add_f32", V(b+8+q), V(b+8+q), V(b+12+q))
        for q in range(2):
            k.valu("v_add_f32", V(b+q), V(b+q), V(b+8+q))
    k.valu("v_lshlrev_b32", V(12), 4, V(9))
    k.valu("v_lshl_add_u32", V(12), V(3), 2, V(12))
    k.valu("v_lshl_add_u32", V(12), V(10), 1, V(12))
    k.valu("v_mul_u32_u24", V(12), 896, V(12))
    k.valu("v_lshl_add_u32", V(12), V(2), 3, V(12))
    e("s_mul_i32 s6, s4, 57344")
    e("s_add_u32 s6, s6, s7")
    for q in range(2):
        k.valu("v_cvt_pk_bf16_f32", V(16+q*2), V(96+q), V(112+q))
        k.valu("v_cvt_pk_bf16_f32", V(17+q*2), V(128+q), V(144+q))
        k.vstore("buffer_store_dwordx2", V(16+q*2, 2), V(12), SOUT, "s6", offset=q*896)
    k.wait_vm_all()
    k.stamp()
    if DBG:
        k.raw("v_readfirstlane_b32 s55, v4")
        k.raw("s_nop 4")
    k.dump("s55", 16)
    k.label("L_op_end")
    e("s_endpgm")
    return k

HEADER = """; Kernarg layout for this problem (64 bytes, ptrs only, base s[0:1]):
;   offset   0: d_in[0] x  shape=(16, 144, 448) dtype=bfloat16 strides=(129024, 896, 2) contiguous=True
;   offset   8: d_in[1] k_cache  shape=(16, 16, 512, 256) dtype=bfloat16 strides=(4194304, 262144, 512, 2) contiguous=True
;   offset  16: d_in[2] v_cache  shape=(16, 16, 512, 256) dtype=bfloat16 strides=(4194304, 262144, 512, 2) contiguous=True
;   offset  24: d_in[3] wq  shape=(448, 4096) dtype=bfloat16 strides=(8192, 2) contiguous=True
;   offset  32: d_in[4] wo  shape=(4096, 448) dtype=bfloat16 strides=(896, 2) contiguous=True
;   offset  40: d_out     shape=(16, 144, 448) dtype=bfloat16 (2 bytes/elem)
;   offset  48: d_debug   256 bytes
;   offset  56: d_ws      268435456 bytes workspace
; Generated by a Python generator script (hand-designed schedule).
; Launch 1: fused Q-projection + attention per (batch, head); writes O (bf16) to d_ws.
; Launch 2: output projection O @ Wo.
; @launch kernel=standalone__mha_block_cached__near_ridge_kernel grid=(256,1,1) block=(256,1,1) lds=%d
; @launch kernel=oproj_kernel grid=(256,1,1) block=(512,1,1) lds=131072
.amdgcn_target "amdgcn-amd-amdhsa--gfx950"
.text
""" % LDS1

def main():
    a = gen_attn(); o = gen_oproj()
    s = HEADER
    s += ".globl standalone__mha_block_cached__near_ridge_kernel\n.p2align 8\n.type standalone__mha_block_cached__near_ridge_kernel,@function\n"
    s += a.text()
    s += ".globl oproj_kernel\n.p2align 8\n.type oproj_kernel,@function\n"
    s += o.text()
    s += """.section .rodata,"a"
.p2align 6
.amdhsa_kernel standalone__mha_block_cached__near_ridge_kernel
  .amdhsa_next_free_vgpr 512
  .amdhsa_next_free_sgpr 96
  .amdhsa_accum_offset 256
  .amdhsa_group_segment_fixed_size 0
  .amdhsa_kernarg_size 64
  .amdhsa_user_sgpr_count 2
  .amdhsa_user_sgpr_kernarg_segment_ptr 1
  .amdhsa_system_sgpr_workgroup_id_x 1
.end_amdhsa_kernel
.p2align 6
.amdhsa_kernel oproj_kernel
  .amdhsa_next_free_vgpr 256
  .amdhsa_next_free_sgpr 96
  .amdhsa_accum_offset 256
  .amdhsa_group_segment_fixed_size 0
  .amdhsa_kernarg_size 64
  .amdhsa_user_sgpr_count 2
  .amdhsa_user_sgpr_kernarg_segment_ptr 1
  .amdhsa_system_sgpr_workgroup_id_x 1
.end_amdhsa_kernel
"""
    out = sys.argv[1] if len(sys.argv) > 1 else "standalone__mha_block_cached__near_ridge.s"
    open(out, "w").write(s)
    print("attn counts", a.count, "nops", a.nops)
    print("oproj counts", o.count, "nops", o.nops)

main()
```
